```python
import torch

def _softmax(x, axis=-1):
    return torch.softmax(x, dim=axis)
def _gelu(x):
    return torch.nn.functional.gelu(x, approximate="tanh")
def _silu(x):
    return torch.nn.functional.silu(x)
def _sigmoid(x):
    return torch.sigmoid(x)
def _layernorm(x, axis=-1, eps=1e-5):
    m = x.mean(dim=axis, keepdim=True)
    v = x.var(dim=axis, keepdim=True, unbiased=False)
    return (x - m) / torch.sqrt(v + eps)
def _scatter_add(tgt, idx, src, axis=0):
    return tgt.clone().index_add_(axis, idx, src)
def _segment_sum(src, seg, n):
    out = torch.zeros((n,) + src.shape[1:], dtype=src.dtype)
    return out.index_add_(0, seg, src)
def _pad(x, pw):
    flat = tuple(v for pair in reversed(pw) for v in pair)
    return torch.nn.functional.pad(x, flat)

kernel_name = 'sequential_preLN__linear_kernel_hedgehog__glu_gated_reglu__prompt'

def setup_inputs():

    _w = (lambda a: (lambda t: t.to(torch.bfloat16) if t.is_floating_point() else t)(torch.as_tensor(a)))
    def _A_setup():
        B, S, D, H = 1, 2048, 640, 32
        Dh = D // H
        return {
            "x": _w((lambda *s: torch.randn(*s, dtype=torch.bfloat16) * 0.05)(B, S, D)),
            "wqkv": _w((lambda *s: torch.randn(*s, dtype=torch.bfloat16) * 0.2)(D, 3 * D)),
            "w_phi": _w((lambda *s: torch.randn(*s, dtype=torch.bfloat16) * 0.2)(H, Dh, Dh) * (Dh ** -0.5)),
            "wo": _w((lambda *s: torch.randn(*s, dtype=torch.bfloat16) * 0.05)(D, D)),
        }
    _A_in = _A_setup()

    def _B_setup():
        B, S, D, F = 1, 2048, 640, 1536
        return {
            "x": _w((lambda *s: torch.randn(*s, dtype=torch.bfloat16) * 0.05)(B, S, D)),
            "W_gate": _w((lambda *s: torch.randn(*s, dtype=torch.bfloat16) * 0.4)(D, F) * (2.0 / D) ** 0.5),
            "W_up": _w((lambda *s: torch.randn(*s, dtype=torch.bfloat16) * 0.4)(D, F) * (2.0 / D) ** 0.5),
            "W_down": _w((lambda *s: torch.randn(*s, dtype=torch.bfloat16) * 0.4)(F, D) * (1.0 / F) ** 0.5),
        }
    _B_in = _B_setup()

    return {
        "A_x": _A_in["x"],
        "A_wqkv": _A_in["wqkv"],
        "A_w_phi": _A_in["w_phi"],
        "A_wo": _A_in["wo"],
        "B_x": _B_in["x"],
        "B_W_gate": _B_in["W_gate"],
        "B_W_up": _B_in["W_up"],
        "B_W_down": _B_in["W_down"],
    }

def reference(A_x, A_wqkv, A_w_phi, A_wo, B_x, B_W_gate, B_W_up, B_W_down):
    def _A_ref(x, wqkv, w_phi, wo):
        B, S, D = x.shape
        H = 32; Dh = D // H
        qkv = (lambda x, *d: x.permute(*d))((x @ wqkv).reshape(B, S, 3, H, Dh), 2, 0, 3, 1, 4)
        q, k, v = qkv[0], qkv[1], qkv[2]
        pq = torch.einsum("bhsd,hdf->bhsf", q, w_phi)
        pk = torch.einsum("bhsd,hdf->bhsf", k, w_phi)
        phi_q = torch.concatenate([_softmax(pq, axis=-1), _softmax(-pq, axis=-1)], axis=-1)
        phi_k = torch.concatenate([_softmax(pk, axis=-1), _softmax(-pk, axis=-1)], axis=-1)
        kv = torch.einsum("bhsf,bhsd->bhfd", phi_k, v)
        z  = torch.einsum("bhsf->bhf", phi_k)
        num = torch.einsum("bhqf,bhfd->bhqd", phi_q, kv)
        den = torch.einsum("bhqf,bhf->bhq", phi_q, z)[..., None] + 1e-6
        o = num / den
        return (lambda x, *d: x.permute(*d))(o, 0, 2, 1, 3).reshape(B, S, D) @ wo

    def _B_ref(x, W_gate, W_up, W_down):
        gate = torch.einsum("bsd,df->bsf", x, W_gate)
        up = torch.einsum("bsd,df->bsf", x, W_up)
        gate = gate * (lambda x, dt: x.to(dt))(gate > 0, gate.dtype)
        h = gate * up
        return torch.einsum("bsf,fd->bsd", h, W_down)

    x = A_x
    h = x + _A_ref(_layernorm(x, axis=-1), A_wqkv, A_w_phi, A_wo)
    h2 = h + _B_ref(_layernorm(h, axis=-1), B_W_gate, B_W_up, B_W_down)
    return h2
```

```python
import re

def _regs(tok):
    tok = tok.strip()
    neg = tok.lstrip('-')
    m = re.fullmatch(r'abs\((.*)\)', neg)
    if m: neg = m.group(1)
    m = re.fullmatch(r'([vsa])(\d+)', neg)
    if m: return [(m.group(1), int(m.group(2)))]
    m = re.fullmatch(r'([vsa])\[(\d+):(\d+)\]', neg)
    if m: return [(m.group(1), i) for i in range(int(m.group(2)), int(m.group(3)) + 1)]
    if neg == 'vcc': return [('s', 106), ('s', 107)]
    if neg == 'vcc_lo': return [('s', 106)]
    if neg == 'vcc_hi': return [('s', 107)]
    if neg == 'exec': return [('s', 126), ('s', 127)]
    if neg == 'exec_lo': return [('s', 126)]
    if neg == 'exec_hi': return [('s', 127)]
    if neg == 'm0': return [('s', 124)]
    return []

TRANS = ('v_exp_f32', 'v_log_f32', 'v_rcp_f32', 'v_rsq_f32', 'v_sqrt_f32', 'v_sin_f32', 'v_cos_f32')

class Ins:
    __slots__ = ('text', 'op', 'kind', 'defs', 'uses', 'passes', 'srcC', 'srcAB', 'nstates', 'wide_store_data', 'dpp')
    def __init__(self, text):
        self.text = text
        t = text.split(';')[0].strip()
        self.passes = 0; self.srcC = []; self.srcAB = []; self.nstates = 1
        self.wide_store_data = []; self.dpp = False
        self.defs = []; self.uses = []
        if not t or t.endswith(':') or t.startswith('.'):
            self.op = ''; self.kind = 'none'; self.nstates = 0
            return
        parts = t.split(None, 1)
        op = parts[0]; self.op = op
        rest = parts[1] if len(parts) > 1 else ''
        ops = []; cur = ''; depth = 0
        for ch in rest:
            if ch in '[(': depth += 1
            if ch in '])': depth -= 1
            if ch == ',' and depth == 0:
                ops.append(cur.strip()); cur = ''
            else:
                cur += ch
        if cur.strip(): ops.append(cur.strip())
        mods = ''
        if ops:
            sp = ops[-1].split(None, 1)
            if len(sp) > 1 and not ops[-1].startswith('hwreg'):
                ops[-1] = sp[0]; mods = sp[1]
        R = [_regs(o) for o in ops]
        flat = lambda L: [r for x in L for r in x]
        if op == 's_nop':
            self.kind = 'salu'; self.nstates = int(ops[0], 0) + 1
        elif op.startswith('v_mfma'):
            self.kind = 'mfma'
            self.passes = 8 if '32x32' in op else 4
            self.defs = R[0]; self.srcAB = R[1] + R[2]; self.srcC = R[3]
            self.uses = self.srcAB + self.srcC
        elif op.startswith('v_'):
            self.kind = 'trans' if op.replace('_e32', '').replace('_e64', '') in TRANS else 'valu'
            self.dpp = ('row_' in mods or 'quad_perm' in mods or 'row_' in rest or op.endswith('_dpp'))
            if op.startswith('v_cmp'):
                self.defs = R[0]; self.uses = flat(R[1:])
            elif op.startswith('v_permlane') and 'swap' in op:
                self.defs = R[0] + R[1]; self.uses = R[0] + R[1]; self.kind = 'permlane'
            elif op.startswith('v_readfirstlane') or op.startswith('v_readlane'):
                self.defs = R[0]; self.uses = flat(R[1:]); self.kind = 'readlane'
            elif op.startswith(('v_add_co', 'v_sub_co', 'v_addc_co', 'v_subb_co')):
                self.defs = R[0] + R[1]; self.uses = flat(R[2:])
            else:
                self.defs = R[0]; self.uses = flat(R[1:])
                if op.startswith(('v_fmac', 'v_dot2c', 'v_mac')) or op.startswith('v_cndmask') and len(ops) == 3:
                    self.uses = self.uses + (R[0] if not op.startswith('v_cndmask') else [('s', 106), ('s', 107)])
        elif op.startswith(('buffer_load', 'global_load')):
            if ' lds' in (' ' + mods) or 'lds' in op.split('_'):
                self.kind = 'dma'; self.uses = flat(R) + [('s', 124)]
            else:
                self.kind = 'vload'; self.defs = R[0]; self.uses = flat(R[1:])
        elif op.startswith(('buffer_store', 'global_store', 'buffer_atomic', 'global_atomic')):
            self.kind = 'vstore'; self.uses = flat(R)
            if op.startswith('buffer_store'): data = R[0]
            elif op.startswith('global_store'): data = R[1]
            else: data = []
            if 'x4' in op or 'x3' in op: self.wide_store_data = data
            if 'atomic' in op and 'sc0' in mods: self.defs = R[0]
        elif op.startswith(('buffer_wbl2', 'buffer_inv')):
            self.kind = 'other'
        elif op.startswith('ds_read') or op.startswith('ds_bpermute') or op.startswith('ds_swizzle'):
            self.kind = 'dsread'; self.defs = R[0]; self.uses = flat(R[1:])
        elif op.startswith('ds_'):
            self.kind = 'dswrite'; self.uses = flat(R)
        elif op.startswith('s_'):
            self.kind = 'salu'
            if op.startswith(('s_cmp', 's_cbranch', 's_branch', 's_waitcnt', 's_barrier', 's_endpgm', 's_sleep', 's_setprio', 's_bitcmp')):
                self.uses = flat(R)
            else:
                self.defs = R[0] if R else []; self.uses = flat(R[1:])
                if 'saveexec' in op: self.defs = self.defs + [('s', 126), ('s', 127)]
        else:
            raise ValueError('unknown instruction: ' + text)

VALULIKE = ('valu', 'trans', 'permlane', 'readlane')

def need(p, c):
    n = 0
    pd = set(p.defs); cu = set(c.uses); cd = set(c.defs)
    pv = {r for r in pd if r[0] in 'va'}; ps = {r for r in pd if r[0] == 's'}
    if p.kind in ('valu', 'trans', 'permlane'):
        if c.kind == 'mfma' and pv & cu: n = max(n, 2)
        if c.kind == 'permlane' and pv & cu: n = max(n, 2)
        if c.dpp and pv & cu: n = max(n, 2)
        if c.kind == 'readlane' and pv & cu: n = max(n, 1)
        if p.kind == 'trans' and c.kind in ('valu', 'permlane', 'readlane') and pv & cu: n = max(n, 1)
    if p.kind in VALULIKE and ps:
        if c.kind in VALULIKE and ps & cu: n = max(n, 4 if c.kind == 'readlane' else 2)
        if c.kind in ('vload', 'vstore', 'dma') and ps & cu: n = max(n, 5)
        if c.kind == 'salu' and ps & cu: n = max(n, 1)
    if p.kind == 'mfma':
        big = 12 if p.passes == 8 else 8
        if c.kind in VALULIKE and pv & (cu | cd): n = max(n, big)
        if c.kind in ('vload', 'vstore', 'dma', 'dsread', 'dswrite') and pv & (cu | cd): n = max(n, big)
        if c.kind == 'mfma':
            if pv & set(c.srcAB): n = max(n, big)
            if pv & set(c.srcC):
                if not (p.defs == c.srcC and p.passes == c.passes): n = max(n, 10 if p.passes == 8 else 6)
            if pv & cd and not (p.defs == c.defs and p.passes == c.passes): n = max(n, 10 if p.passes == 8 else 6)
        if c.kind in VALULIKE and set(p.srcC) & cd: n = max(n, 7 if p.passes == 8 else 3)
    if p.kind == 'salu' and ('s', 124) in pd and c.kind == 'dma': n = max(n, 1)
    if p.wide_store_data and set(p.wide_store_data) & cd:
        n = max(n, 2 if c.kind in VALULIKE or c.kind == 'mfma' else 1)
    return n

class Asm:
    def __init__(self):
        self.lines = []
    def __call__(self, text):
        for l in text.split('\n'):
            self.lines.append(l)
    def label(self, name): self.lines.append(name + ':')
    def text(self, pad=True):
        if not pad: return '\n'.join(self.lines) + '\n'
        out = []; hist = []
        npad = 0
        for l in self.lines:
            ins = Ins(l)
            if ins.kind == 'none':
                out.append(l if (l.strip().endswith(':') or l.strip().startswith('.') or not l.strip()) else l)
                continue
            extra = 0; dist = 0
            for p in hist:
                r = need(p, ins)
                if r > dist: extra = max(extra, r - dist)
                dist += p.nstates
                if dist >= 20: break
            while extra > 0:
                k = min(extra, 16)
                nop = Ins('s_nop %d' % (k - 1))
                out.append('  s_nop %d' % (k - 1)); hist.insert(0, nop); extra -= k; npad += 1
            out.append(l if l.startswith(' ') else '  ' + l)
            hist.insert(0, ins)
            if len(hist) > 24: hist.pop()
        self.npad = npad
        return '\n'.join(out) + '\n'

def vr(a, n=1):
    return 'v%d' % a if n == 1 else 'v[%d:%d]' % (a, a + n - 1)
def sr(a, n=1):
    return 's%d' % a if n == 1 else 's[%d:%d]' % (a, a + n - 1)
```

```python
from asmlib import *
KN = 'sequential_preLN__linear_kernel_hedgehog__glu_gated_reglu__prompt'
KA_X, KA_WQKV, KA_WPHI, KA_WO, KA_BX, KA_WG, KA_WU, KA_WD, KA_OUT, KA_DBG, KA_WS = [8*i for i in range(11)]
SZ_X = 2048*1280; SZ_WQKV = 640*3840; SZ_WPHI = 32*800; SZ_WO = 640*1280
SZ_WG = 640*3072; SZ_WD = 1536*1280; SZ_OUT = 2048*1280; SZ_WS = 1 << 28
WS_PHIQ = 0x0000000
WS_KVP  = 0x0600000
WS_OF   = 0x0700000
WS_HF   = 0x0A00000
WS_STAT = 0x0D00000
WS_CSP  = 0x0D40000
WS_HID  = 0x0E00000
WS_END  = 0x1400000
LOG2E = 0x3fb8aa3b

def srd(a, s, kaoff_reg, size):
    a('s_mov_b32 s%d, s%d' % (s, kaoff_reg))
    a('s_mov_b32 s%d, s%d' % (s+1, kaoff_reg+1))
    a('s_mov_b32 s%d, 0x%x' % (s+2, size))
    a('s_mov_b32 s%d, 0x20000' % (s+3))

def entry(a, name, nwg=256):
    a('.text')
    a('.globl %s' % name)
    a('.p2align 8')
    a('.type %s,@function' % name)
    a.label(name)
    a('s_cmp_ge_u32 s2, %d' % nwg)
    a('s_cbranch_scc1 %s_end' % name)

def kd(name, vgpr=256, sgpr=102, acc=256):
    return '''.section .rodata,"a"
.p2align 6
.amdhsa_kernel %s
  .amdhsa_next_free_vgpr %d
  .amdhsa_next_free_sgpr %d
  .amdhsa_accum_offset %d
  .amdhsa_group_segment_fixed_size 0
  .amdhsa_kernarg_size 88
  .amdhsa_user_sgpr_count 2
  .amdhsa_user_sgpr_kernarg_segment_ptr 1
  .amdhsa_system_sgpr_workgroup_id_x 1
.end_amdhsa_kernel
''' % (name, vgpr, sgpr, acc)

def wgmap(a, si, sj):
    a('s_and_b32 s%d, s2, 7' % si)
    a('s_lshl_b32 s%d, s%d, 1' % (si, si))
    a('s_bfe_u32 s%d, s2, 0x10003' % sj)
    a('s_add_u32 s%d, s%d, s%d' % (si, si, sj))
    a('s_lshr_b32 s%d, s2, 4' % sj)
```

```python
from common import *

CHUNKPOS = {0: [0,1,2,3,12], 1: [6,7,4,5,14], 2: [9,11,8,10,13]}
def wtab(t, half, hd):
    w = 0
    for idx4 in range(4):
        I = 4*t + idx4
        if I <= 4: sec, idx = (0 if half == 0 else 1), I
        elif half == 0: sec, idx = 2, I-5
        elif I <= 6: sec, idx = 2, I-2
        else: sec, idx = None, None
        if sec is None:
            val = (2*2+1) if hd == 0 else 0
        else:
            u = 5*hd + idx
            val = CHUNKPOS[sec][u >> 1]*2 + (u & 1)
        w |= val << (8*idx4)
    return w

XR, WR = 0, 65536
PHI, ZERO, ST, CS = 131072, 135168, 136192, 137216
K1_LDS = 138240
KVB = 0

def k1(a, name, standalone=True):
    entry(a, name)
    a('s_load_dwordx4 s[24:27], s[0:1], %d' % KA_X)
    a('s_load_dwordx2 s[28:29], s[0:1], %d' % KA_WPHI)
    a('s_load_dwordx2 s[30:31], s[0:1], %d' % KA_WS)
    a('v_lshrrev_b32 v2, 6, v0')
    a('v_and_b32 v1, 63, v0')
    a('v_readfirstlane_b32 s3, v2')
    wgmap(a, 4, 5)
    a('s_xor_b32 s6, s5, 1')
    a('s_waitcnt lgkmcnt(0)')
    srd(a, 8, 24, SZ_X); srd(a, 12, 26, SZ_WQKV); srd(a, 16, 28, SZ_WPHI); srd(a, 20, 30, SZ_WS)
    a('s_cmp_ge_u32 s3, 4')
    a('s_cbranch_scc1 %s_loader' % name)
    k1_consumer(a, name)
    a('s_branch %s_end' % name)
    a.label(name + '_loader')
    k1_loader(a, name)
    a.label(name + '_end')
    a('s_endpgm')

NSLOT = 4
def k1_loader(a, name):
    a('s_sub_u32 s32, s3, 4')
    a('v_lshrrev_b32 v2, 3, v1')
    a('v_and_b32 v3, 7, v1')
    a('v_lshrrev_b32 v4, 4, v1')
    a('s_and_b32 s33, s32, 1')
    a('s_lshl_b32 s33, s33, 2')
    a('v_add_u32 v4, s33, v4')
    a('v_xor_b32 v3, v3, v4')
    a('v_mul_u32_u24 v10, 1280, v2')
    a('v_lshl_add_u32 v10, v3, 4, v10')
    a('v_lshrrev_b32 v2, 4, v1')
    a('v_and_b32 v3, 15, v1')
    a('v_lshlrev_b32 v4, 2, v2')
    a('v_xor_b32 v3, v3, v4')
    a('v_and_b32 v4, 7, v3')
    a('v_lshlrev_b32 v4, 2, v4')
    a('v_cmp_le_u32 vcc, 8, v3')
    a('v_mov_b32 v5, 0x10323210')
    a('v_mov_b32 v6, 0x44441302')
    a('v_cndmask_b32 v5, v5, v6, vcc')
    a('v_bfe_u32 v5, v5, v4, 4')
    a('v_mov_b32 v6, 0x11110000')
    a('v_mov_b32 v7, 0x11202222')
    a('v_cndmask_b32 v6, v6, v7, vcc')
    a('v_bfe_u32 v6, v6, v4, 4')
    a('s_mul_i32 s34, s6, 80')
    a('s_mul_i32 s35, s5, 80')
    a('v_mov_b32 v7, s35')
    a('v_mov_b32 v8, s34')
    a('v_cmp_eq_u32 vcc, 0, v6')
    a('v_cndmask_b32 v7, v7, v8, vcc')
    a('v_mul_u32_u24 v11, 1280, v6')
    a('v_add_u32 v11, v11, v7')
    a('v_lshl_add_u32 v11, v5, 4, v11')
    a('v_mul_u32_u24 v2, 3840, v2')
    a('v_add_u32 v11, v11, v2')
    a('s_lshl_b32 s36, s4, 7')
    a('s_lshl_b32 s37, s32, 3')
    a('s_add_u32 s36, s36, s37')
    a('s_mul_i32 s36, s36, 1280')
    a('s_mul_i32 s37, s32, %d' % (4*3840))
    a('s_lshl_b32 s38, s32, 10')
    a('v_lshlrev_b32 v12, 4, v1')
    a('s_lshr_b32 s39, s32, 1')
    a('s_cmp_eq_u32 s39, 0')
    a('s_cselect_b32 s40, s6, s5')
    a('s_mul_i32 s40, s40, 1600')
    a('s_and_b32 s41, s32, 1')
    a('s_lshl_b32 s41, s41, 10')
    a('s_add_u32 s40, s40, s41')
    a('s_add_u32 m0, s38, %d' % PHI)
    a('buffer_load_dwordx4 v12, s[16:19], s40 offen lds')
    def issue(st):
        slot = st % NSLOT
        for q in range(4):
            a('s_add_u32 s42, s36, %d' % (q*32*1280 + st*128))
            a('s_add_u32 m0, s38, %d' % (XR + slot*16384 + q*4096))
            a('buffer_load_dwordx4 v10, s[8:11], s42 offen lds')
            a('s_add_u32 s42, s37, %d' % ((st*64 + q*16)*3840))
            a('s_add_u32 m0, s38, %d' % (WR + slot*16384 + q*4096))
            a('buffer_load_dwordx4 v11, s[12:15], s42 offen lds')
    for st in range(NSLOT): issue(st)
    a('s_waitcnt vmcnt(%d)' % (8*(NSLOT-1)))
    a('s_barrier')
    for s in range(10):
        if s+1 <= 9:
            later = min(s+NSLOT-1, 9) - (s+1)
            a('s_waitcnt vmcnt(%d)' % (8*later))
        a('s_barrier')
        if s+NSLOT <= 9: issue(s+NSLOT)

ACC, FR = 16, 80
AX, AW = 112, 120
SX, SQ = 122, 123
PA = 124
CS0, CS1, ONES = 148, 149, 150
NMEAN = [152, 154]; RSTD = [156, 158]
QB = [160, 176]
EX = 192
PK = [232, 80]
CSD = 80

def accr(tt, t): return ACC + (2*tt+t)*16
def xfr(b, tt): return FR + 16*b + 4*tt
def wfr(b, t): return FR + 16*b + 8 + 4*t

def k1_consumer(a, name):
    a('s_lshr_b32 s32, s3, 1')
    a('s_and_b32 s33, s3, 1')
    a('v_and_b32 v2, 31, v1')
    a('v_lshrrev_b32 v3, 5, v1')
    a('s_lshl_b32 s34, s32, 6')
    a('v_add_u32 v4, s34, v2')
    a('v_lshlrev_b32 v4, 7, v4')
    a('s_lshl_b32 s35, s33, 12')
    a('v_add_u32 v4, s35, v4')
    a('v_xor_b32 v7, 0x1000, v4')
    a('v_bfe_u32 v5, v2, 1, 3')
    a('v_xor_b32 v5, v5, v3')
    for ks in range(4):
        a('v_xor_b32 v6, %d, v5' % (2*ks))
        a('v_lshl_add_u32 v%d, v6, 4, v4' % (AX+ks))
        a('v_lshl_add_u32 v%d, v6, 4, v7' % (AX+4+ks))
    a('v_lshrrev_b32 v4, 4, v1')
    a('v_bfe_u32 v5, v1, 2, 2')
    a('v_and_b32 v6, 3, v1')
    a('v_and_b32 v7, 1, v4')
    a('v_lshlrev_b32 v7, 1, v7')
    a('v_lshrrev_b32 v8, 1, v6')
    a('v_add_u32 v7, v7, v8')
    a('v_lshlrev_b32 v7, 3, v7')
    a('v_and_b32 v8, 1, v6')
    a('v_cmp_eq_u32 vcc, 1, v8')
    a('v_lshrrev_b32 v9, 1, v4')
    a('v_lshlrev_b32 v9, 3, v9')
    a('v_add_u32 v9, v9, v5')
    a('v_lshlrev_b32 v9, 8, v9')
    a('v_lshlrev_b32 v10, 2, v5')
    a('s_cmp_eq_u32 s33, 0')
    for t in range(2):
        a('s_mov_b32 s34, 0x%x' % wtab(t,0,1))
        a('s_cselect_b32 s34, 0x%x, s34' % wtab(t,0,0))
        a('s_mov_b32 s35, 0x%x' % wtab(t,1,1))
        a('s_cselect_b32 s35, 0x%x, s35' % wtab(t,1,0))
        a('v_mov_b32 v11, s34')
        a('v_mov_b32 v12, s35')
        a('v_cndmask_b32 v11, v11, v12, vcc')
        a('v_bfe_u32 v11, v11, v7, 8')
        a('v_lshrrev_b32 v12, 1, v11')
        a('v_xor_b32 v12, v12, v10')
        a('v_and_b32 v11, 1, v11')
        a('v_lshlrev_b32 v11, 3, v11')
        a('v_lshl_add_u32 v11, v12, 4, v11')
        a('v_add_u32 v11, v11, v9')
        a('v_add_u32 v%d, %d, v11' % (AW+t, WR))
    a('v_mov_b32 v%d, 0x3f803f80' % ONES)
    for r in (SX, SQ, CS0, CS1): a('v_mov_b32 v%d, 0' % r)
    a('v_mov_b32 v12, 0'); a('v_mov_b32 v13, 0'); a('v_mov_b32 v14, 0'); a('v_mov_b32 v15, 0')
    a('v_lshlrev_b32 v11, 4, v1')
    a('v_add_u32 v11, %d, v11' % ZERO)
    a('ds_write_b128 v11, v[12:15]')
    a('v_lshrrev_b32 v11, 1, v4')
    a('v_cmp_eq_u32 s[36:37], v11, v8')
    a('v_lshrrev_b32 v12, 3, v7')
    a('v_lshlrev_b32 v13, 11, v8')
    a('v_mul_u32_u24 v14, 40, v5')
    a('v_add_u32 v13, v13, v14')
    a('v_lshl_add_u32 v13, v12, 3, v13')
    a('s_mul_i32 s34, s33, 800')
    a('s_add_u32 s34, s34, %d' % PHI)
    a('v_add_u32 v13, s34, v13')
    a('v_mov_b32 v14, %d' % ZERO)
    a('v_cndmask_b32 v152, v14, v13, s[36:37]')
    a('v_add_u32 v13, 32, v13')
    a('v_cmp_eq_u32 vcc, 0, v12')
    a('s_and_b64 s[36:37], s[36:37], vcc')
    a('v_cndmask_b32 v153, v14, v13, s[36:37]')
    a('s_waitcnt lgkmcnt(0)')
    a('s_barrier')
    for T in range(2):
        for s in range(3):
            for h in range(2):
                r0 = PA + (3*T+s)*4 + 2*h
                if s == 2 and h == 1:
                    a('v_mov_b32 v%d, 0' % r0); a('v_mov_b32 v%d, 0' % (r0+1))
                else:
                    a('ds_read_b64_tr_b16 %s, v%d offset:%d' % (vr(r0,2), 152+T, (8*s+4*h)*40))
    def reads(s, ks, b):
        slot = s % NSLOT
        for tt in range(2):
            a('ds_read_b128 %s, v%d offset:%d' % (vr(xfr(b,tt),4), AX+4*tt+ks, XR + slot*16384))
        for t in range(2):
            for h in range(2):
                a('ds_read_b64_tr_b16 %s, v%d offset:%d' % (vr(wfr(b,t)+2*h,2), AW+t, slot*16384 + ks*4096 + h*1024))
    reads(0, 0, 0)
    for s in range(10):
        for ks in range(4):
            b = (4*s+ks) & 1
            if ks < 3:
                reads(s, ks+1, b^1)
                a('s_waitcnt lgkmcnt(6)')
            else:
                a('s_waitcnt lgkmcnt(0)')
                a('s_barrier')
                if s < 9: reads(s+1, 0, b^1)
            first = (s == 0 and ks == 0)
            for tt in range(2):
                for t in range(2):
                    c = '0' if first else vr(accr(tt,t),16)
                    a('v_mfma_f32_32x32x16_bf16 %s, %s, %s, %s' % (vr(accr(tt,t),16), vr(wfr(b,t),4), vr(xfr(b,tt),4), c))
            for d in range(4):
                x = xfr(b,0)+d
                a('v_dot2c_f32_bf16 v%d, v%d, v%d' % (SQ, x, x))
                a('v_dot2c_f32_bf16 v%d, v%d, v%d' % (CS0, wfr(b,0)+d, ONES))
                a('v_dot2c_f32_bf16 v%d, v%d, v%d' % (SX, x, ONES))
                a('v_dot2c_f32_bf16 v%d, v%d, v%d' % (CS1, wfr(b,1)+d, ONES))
    k1_epilogue(a, name)

def halfsum(a, r, tmp):
    a('v_mov_b32 v%d, v%d' % (tmp, r))
    a('v_permlane32_swap_b32 v%d, v%d' % (r, tmp))
    a('v_add_f32 v%d, v%d, v%d' % (r, r, tmp))

def k1_epilogue(a, name):
    for r in (SX, SQ, CS0, CS1): halfsum(a, r, 2)
    a('v_and_b32 v2, 31, v1')
    a('v_lshrrev_b32 v3, 5, v1')
    a('s_lshl_b32 s34, s32, 1')
    a('s_add_u32 s34, s34, s33')
    a('s_lshl_b32 s34, s34, 8')
    a('s_add_u32 s34, s34, %d' % ST)
    a('v_lshl_add_u32 v4, v2, 3, s34')
    a('ds_write_b64 v4, %s' % vr(SX,2))
    a('s_lshl_b32 s35, s3, 8')
    a('s_add_u32 s35, s35, %d' % CS)
    a('v_lshl_add_u32 v5, v2, 2, s35')
    a('ds_write_b32 v5, v%d' % CS0)
    a('ds_write_b32 v5, v%d offset:128' % CS1)
    a('s_waitcnt lgkmcnt(0)')
    a('s_barrier')
    a('v_xor_b32 v6, 256, v4')
    a('ds_read_b64 v[8:9], v6')
    a('v_lshl_add_u32 v5, v3, 4, s35')
    for t in range(2):
        for i in range(4):
            a('ds_read_b128 %s, v5 offset:%d' % (vr(CSD+16*t+4*i,4), t*128 + i*32))
    a('s_mov_b32 s36, 0x3acccccd')
    def mkstats(tt, sx, sq):
        a('v_mul_f32 v10, s36, v%d' % sx)
        a('v_mul_f32 v11, s36, v%d' % sq)
        a('v_fma_f32 v11, -v10, v10, v11')
        a('v_max_f32 v11, 0, v11')
        a('v_add_f32 v11, 0x3727c5ac, v11')
        a('v_rsq_f32 v%d, v11' % RSTD[tt])
        a('v_sub_f32 v%d, 0, v10' % NMEAN[tt])
    mkstats(0, SX, SQ)
    a('s_waitcnt lgkmcnt(8)')
    mkstats(1, 8, 9)
    a('s_waitcnt lgkmcnt(0)')
    for tt in range(2):
        for t in range(2):
            for p in range(8):
                r = accr(tt,t)+2*p
                a('v_pk_fma_f32 %s, %s, %s, %s op_sel_hi:[1,0,1]' % (vr(r,2), vr(CSD+16*t+2*p,2), vr(NMEAN[tt],2), vr(r,2)))
            for p in range(8):
                r = accr(tt,t)+2*p
                a('v_pk_mul_f32 %s, %s, %s op_sel_hi:[1,0]' % (vr(r,2), vr(r,2), vr(RSTD[tt],2)))
            for p in range(8):
                r = accr(tt,t)+2*p
                a('v_cvt_pk_bf16_f32 v%d, v%d, v%d' % (QB[tt]+8*t+p, r, r+1))
    for tt in range(2):
        for T in range(2):
            for s in range(3):
                c = '0' if s == 0 else vr(accr(tt,T),16)
                a('v_mfma_f32_32x32x16_bf16 %s, %s, %s, %s' % (vr(accr(tt,T),16), vr(PA+(3*T+s)*4,4), vr(QB[tt]+4*s,4), c))
    a('s_mul_i32 s34, s33, 24576')
    a('s_lshl_b32 s35, s32, 6')
    a('v_add_u32 v4, s35, v2')
    a('v_mul_u32_u24 v4, 192, v4')
    a('v_add_u32 v4, s34, v4')
    a('s_mul_i32 s35, s33, %d' % (32*192))
    a('v_add_u32 v5, s35, v4')
    a('s_sub_u32 s35, %d, s35' % (32*192))
    a('v_add_u32 v6, s35, v4')
    a('v_bfe_u32 v7, v2, 1, 3')
    a('s_mov_b32 s38, 0x%x' % LOG2E); a('s_mov_b32 s39, 0x%x' % LOG2E)
    for tt in range(2):
        softmax(a, tt)
        pk = PK[tt]
        for u in range(10):
            a('v_permlane32_swap_b32 v%d, v%d' % (pk+u, pk+10+u))
        rowb = 5+tt
        for u2 in range(5):
            a('v_mul_u32_u24 v8, 5, v3')
            a('v_add_u32 v8, %d, v8' % u2)
            a('v_xor_b32 v9, v8, v7')
            a('v_and_b32 v9, 7, v9')
            a('v_and_b32 v8, 8, v8')
            a('v_or_b32 v8, v8, v9')
            a('v_lshl_add_u32 v8, v8, 3, v%d' % rowb)
            a('ds_write_b64 v8, %s' % vr(pk+10+2*u2,2))
        a('v_cmp_eq_u32 vcc, 1, v3')
        a('v_mov_b32 v10, 0x3f80')
        a('v_mov_b32 v11, 0')
        a('v_cndmask_b32 v%d, v%d, v10, vcc' % (QB[tt]+14, QB[tt]+14))
        a('v_cndmask_b32 v%d, v%d, v11, vcc' % (QB[tt]+15, QB[tt]+15))
        for q in range(3):
            a('v_mul_u32_u24 v8, 3, v3')
            a('v_add_u32 v8, %d, v8' % q)
            a('v_xor_b32 v9, v8, v7')
            a('v_and_b32 v9, 7, v9')
            a('v_add_u32 v9, 16, v9')
            a('v_lshl_add_u32 v8, v9, 3, v%d' % rowb)
            a('ds_write_b64 v8, %s' % vr(QB[tt]+10+2*q,2))
    a('s_lshl_b32 s34, s4, 4')
    a('s_add_u32 s34, s34, s5')
    a('s_lshl_b32 s34, s34, 2')
    a('s_add_u32 s34, s34, s3')
    a('s_lshl_b32 s34, s34, 1')
    a('v_lshlrev_b32 v8, 4, v1')
    a('v_lshlrev_b32 v9, 3, v1')
    for tt in range(2):
        if tt == 0: a('s_add_u32 s35, s34, s33')
        else:
            a('s_xor_b32 s35, s33, 1'); a('s_add_u32 s35, s34, s35')
        a('s_mul_i32 s35, s35, 2560')
        a('s_add_u32 s35, s35, %d' % WS_PHIQ)
        pk = PK[tt]
        a('buffer_store_dwordx4 %s, v8, s[20:23], s35 offen' % vr(pk,4))
        a('buffer_store_dwordx4 %s, v8, s[20:23], s35 offen offset:1024' % vr(pk+4,4))
        a('buffer_store_dwordx2 %s, v9, s[20:23], s35 offen offset:2048' % vr(pk+8,2))
    a('s_waitcnt lgkmcnt(0)')
    a('s_barrier')
    a('v_lshrrev_b32 v4, 4, v1')
    a('v_bfe_u32 v5, v1, 2, 2')
    a('v_and_b32 v6, 3, v1')
    a('v_lshrrev_b32 v8, 1, v4')
    a('v_lshlrev_b32 v9, 3, v8')
    a('v_add_u32 v9, v9, v5')
    a('v_and_b32 v10, 1, v4')
    a('v_lshl_add_u32 v10, v10, 2, v6')
    a('s_mul_i32 s34, s33, 24576')
    for h in range(2):
        a('v_add_u32 v11, %d, v9' % (4*h))
        a('v_bfe_u32 v12, v11, 1, 3')
        a('v_xor_b32 v12, v12, v10')
        a('v_mul_u32_u24 v11, 192, v11')
        a('v_lshl_add_u32 v11, v12, 3, v11')
        a('v_add_u32 v%d, s34, v11' % (12+h+1))
    a('s_lshl_b32 s35, s32, 6')
    a('v_add_u32 v15, s35, v13')
    a('v_add_u32 v2, s35, v14')
    KA, KB, KD = 160, 192, 16
    for ks in range(8):
        a('ds_read_b64_tr_b16 %s, v15 offset:%d' % (vr(KA+4*ks,2), ks*3072))
        a('ds_read_b64_tr_b16 %s, v2 offset:%d' % (vr(KA+4*ks+2,2), ks*3072))
        a('ds_read_b64_tr_b16 %s, v13 offset:%d' % (vr(KB+4*ks,2), ks*3072+128))
        a('ds_read_b64_tr_b16 %s, v14 offset:%d' % (vr(KB+4*ks+2,2), ks*3072+128))
        if ks >= 2:
            a('s_waitcnt lgkmcnt(8)')
            k = ks-2
            a('v_mfma_f32_32x32x16_bf16 %s, %s, %s, %s' % (vr(KD,16), vr(KA+4*k,4), vr(KB+4*k,4), '0' if k == 0 else vr(KD,16)))
    for k, w in ((6, 4), (7, 0)):
        a('s_waitcnt lgkmcnt(%d)' % w)
        a('v_mfma_f32_32x32x16_bf16 %s, %s, %s, %s' % (vr(KD,16), vr(KA+4*k,4), vr(KB+4*k,4), vr(KD,16)))
    a('v_and_b32 v2, 31, v1')
    a('v_lshrrev_b32 v3, 5, v1')
    a('v_mul_u32_u24 v4, 21, v3')
    a('v_add_u32 v4, v4, v2')
    a('v_lshlrev_b32 v4, 3, v4')
    a('s_lshl_b32 s34, s5, 4')
    a('s_add_u32 s34, s34, s4')
    a('s_mul_i32 s34, s34, 3360')
    a('s_mul_i32 s35, s33, 1680')
    a('s_add_u32 s34, s34, s35')
    a('s_mul_i32 s35, s32, %d' % (8*21*8))
    a('s_add_u32 s34, s34, s35')
    a('s_add_u32 s34, s34, %d' % WS_KVP)
    a('v_cmp_ge_u32 vcc, 20, v2')
    a('s_and_saveexec_b64 s[36:37], vcc')
    for ii in range(4):
        a('v_cvt_pk_bf16_f32 v%d, v%d, v%d' % (40+2*ii, KD+4*ii, KD+4*ii+1))
        a('v_cvt_pk_bf16_f32 v%d, v%d, v%d' % (41+2*ii, KD+4*ii+2, KD+4*ii+3))
    a('buffer_store_dwordx2 v[40:41], v4, s[20:23], s34 offen')
    a('s_cmp_eq_u32 s32, 0')
    a('s_cbranch_scc0 %s_kvdone' % name)
    for ii in range(1, 4):
        a('buffer_store_dwordx2 %s, v4, s[20:23], s34 offen offset:%d' % (vr(40+2*ii,2), ii*2*21*8))
    a.label(name + '_kvdone')
    a('s_mov_b64 exec, s[36:37]')

def softmax(a, tt):
    P0 = accr(tt,0); P1 = accr(tt,1)
    p = [P0+i for i in range(16)] + [P1+i for i in range(4)]
    for (op3, op2, base) in (('v_max3_f32', 'v_max_f32', 2), ('v_min3_f32', 'v_min_f32', 8)):
        pass
    def tree(op3, op2, t0, dst):
        for g in range(6):
            a('%s v%d, v%d, v%d, v%d' % (op3, t0+g, p[3*g], p[3*g+1], p[3*g+2]))
        a('%s v%d, v%d, v%d, v%d' % (op3, t0+6, p[18], p[19], t0))
        a('%s v%d, v%d, v%d, v%d' % (op3, t0+7, t0+1, t0+2, t0+3))
        a('%s v%d, v%d, v%d, v%d' % (op3, t0+8, t0+4, t0+5, t0+6))
        a('%s v%d, v%d, v%d' % (op2, dst, t0+7, t0+8))
    tree('v_max3_f32', 'v_max_f32', EX, 10)
    tree('v_min3_f32', 'v_min_f32', EX+10, 12)
    a('v_mul_f32 v10, 0x%x, v10' % (LOG2E | 0x80000000))
    a('v_mul_f32 v12, 0x%x, v12' % LOG2E)
    pp = [P0+2*i for i in range(8)] + [P1, P1+2]
    for k in range(10):
        a('v_pk_fma_f32 %s, %s, s[38:39], v[10:11] op_sel_hi:[1,1,0]' % (vr(EX+2*k,2), vr(pp[k],2)))
        a('v_pk_fma_f32 %s, %s, s[38:39], v[12:13] op_sel_hi:[1,1,0] neg_lo:[1,0,0] neg_hi:[1,0,0]' % (vr(EX+20+2*k,2), vr(pp[k],2)))
    for k in range(40):
        a('v_exp_f32 v%d, v%d' % (EX+k, EX+k))
    for half in range(2):
        e = EX + 20*half; t = P0 + 8*half
        a('v_pk_add_f32 %s, %s, %s' % (vr(t,2), vr(e,2), vr(e+2,2)))
        a('v_pk_add_f32 %s, %s, %s' % (vr(t+2,2), vr(e+4,2), vr(e+6,2)))
        a('v_pk_add_f32 %s, %s, %s' % (vr(t+4,2), vr(e+8,2), vr(e+10,2)))
        a('v_pk_add_f32 %s, %s, %s' % (vr(t+6,2), vr(e+12,2), vr(e+14,2)))
    for half in range(2):
        e = EX + 20*half; t = P0 + 8*half
        a('v_pk_add_f32 %s, %s, %s' % (vr(t,2), vr(t,2), vr(t+2,2)))
        a('v_pk_add_f32 %s, %s, %s' % (vr(t+4,2), vr(t+4,2), vr(t+6,2)))
        a('v_pk_add_f32 %s, %s, %s' % (vr(t+2,2), vr(e+16,2), vr(e+18,2)))
    for half in range(2):
        t = P0 + 8*half
        a('v_pk_add_f32 %s, %s, %s' % (vr(t,2), vr(t,2), vr(t+4,2)))
    for half in range(2):
        t = P0 + 8*half
        a('v_pk_add_f32 %s, %s, %s' % (vr(t,2), vr(t,2), vr(t+2,2)))
    for half in range(2):
        t = P0 + 8*half
        a('v_add_f32 v%d, v%d, v%d' % (t, t, t+1))
    a('v_rcp_f32 v10, v%d' % P0)
    a('v_rcp_f32 v12, v%d' % (P0+8))
    for k in range(10):
        a('v_pk_mul_f32 %s, %s, v[10:11] op_sel_hi:[1,0]' % (vr(EX+2*k,2), vr(EX+2*k,2)))
        a('v_pk_mul_f32 %s, %s, v[12:13] op_sel_hi:[1,0]' % (vr(EX+20+2*k,2), vr(EX+20+2*k,2)))
    for k in range(20):
        a('v_cvt_pk_bf16_f32 v%d, v%d, v%d' % (PK[tt]+k, EX+2*k, EX+2*k+1))
```

```python
from common import *
from k1 import halfsum
K2_LDS = 16384
KVT = 0; CT = 8192

def k2(a, name):
    entry(a, name)
    a('s_load_dwordx4 s[24:27], s[0:1], %d' % KA_WG)
    a('s_load_dwordx2 s[30:31], s[0:1], %d' % KA_WS)
    a('v_lshrrev_b32 v2, 6, v0')
    a('v_and_b32 v1, 63, v0')
    a('v_readfirstlane_b32 s3, v2')
    wgmap(a, 4, 5)
    a('s_xor_b32 s6, s5, 1')
    a('s_waitcnt lgkmcnt(0)')
    srd(a, 20, 30, SZ_WS)
    p2_body(a, name, load_phiq=True)
    a.label(name + '_end')
    a('s_endpgm')

BQ = [100, 112]
def p2_body(a, name, load_phiq):
    a('s_lshl_b32 s34, s6, 4')
    a('s_mul_i32 s34, s34, 3360')
    a('s_add_u32 s34, s34, %d' % WS_KVP)
    a('v_lshlrev_b32 v4, 3, v0')
    a('v_cmp_gt_u32 vcc, 420, v0')
    a('s_and_saveexec_b64 s[36:37], vcc')
    a('s_cbranch_execz %s_nopart' % name)
    for ii in range(16):
        a('s_add_u32 s35, s34, %d' % (ii*3360))
        a('buffer_load_dwordx2 %s, v4, s[20:23], s35 offen' % vr(16+2*ii,2))
    a.label(name + '_nopart')
    a('s_mov_b64 exec, s[36:37]')
    a('s_cmp_ge_u32 s3, 4')
    a('s_cbranch_scc1 %s_cs1' % name)
    if load_phiq:
        a('s_lshl_b32 s34, s4, 4')
        a('s_add_u32 s34, s34, s5')
        a('s_lshl_b32 s34, s34, 2')
        a('s_add_u32 s34, s34, s3')
        a('s_mul_i32 s34, s34, 5120')
        a('s_add_u32 s34, s34, %d' % WS_PHIQ)
        a('v_lshlrev_b32 v8, 4, v1')
        a('v_lshlrev_b32 v9, 3, v1')
        for tt in range(2):
            a('s_add_u32 s35, s34, %d' % (tt*2560))
            a('buffer_load_dwordx4 %s, v8, s[20:23], s35 offen' % vr(BQ[tt],4))
            a('buffer_load_dwordx4 %s, v8, s[20:23], s35 offen offset:1024' % vr(BQ[tt]+4,4))
            a('buffer_load_dwordx2 %s, v9, s[20:23], s35 offen offset:2048' % vr(BQ[tt]+8,2))
            a('v_mov_b32 v%d, 0' % (BQ[tt]+10)); a('v_mov_b32 v%d, 0' % (BQ[tt]+11))
    a('s_branch %s_red' % name)
    a.label(name + '_cs1')
    a('s_cmp_ge_u32 s3, 6')
    a('s_cselect_b32 s8, s26, s24')
    a('s_cselect_b32 s9, s27, s25')
    a('s_mov_b32 s10, 0x%x' % SZ_WG)
    a('s_mov_b32 s11, 0x20000')
    a('v_and_b32 v5, 127, v0')
    a('v_mul_u32_u24 v6, 5462, v5')
    a('v_lshrrev_b32 v6, 16, v6')
    a('v_mul_u32_u24 v7, 12, v6')
    a('v_sub_u32 v7, v5, v7')
    a('v_mul_u32_u24 v8, %d, v6' % (4*3072))
    a('v_lshl_add_u32 v8, v7, 4, v8')
    a('s_mul_i32 s34, s4, %d' % (40*3072))
    a('s_mul_i32 s35, s5, 192')
    a('s_add_u32 s34, s34, s35')
    a('v_cmp_gt_u32 vcc, 120, v5')
    a('s_and_saveexec_b64 s[36:37], vcc')
    for r in range(4):
        a('s_add_u32 s35, s34, %d' % (r*3072))
        a('buffer_load_dwordx4 %s, v8, s[8:11], s35 offen' % vr(64+4*r,4))
    a('s_mov_b64 exec, s[36:37]')
    a.label(name + '_red')
    a('v_cmp_gt_u32 vcc, 420, v0')
    a('s_and_saveexec_b64 s[36:37], vcc')
    a('s_cbranch_execz %s_zpad' % name)
    a('v_cmp_le_u32 vcc, 210, v0')
    a('v_cndmask_b32 v5, 0, 1, vcc')
    a('v_mul_u32_u24 v6, 210, v5')
    a('v_sub_u32 v6, v0, v6')
    a('v_mul_u32_u24 v7, 3121, v6')
    a('v_lshrrev_b32 v7, 16, v7')
    a('v_mul_u32_u24 v8, 21, v7')
    a('v_sub_u32 v8, v6, v8')
    a('v_cmp_le_u32 vcc, 5, v7')
    a('v_cndmask_b32 v9, 0, 1, vcc')
    a('v_mul_u32_u24 v10, 5, v9')
    a('v_sub_u32 v10, v7, v10')
    a('v_mul_u32_u24 v11, 3072, v5')
    a('v_mul_u32_u24 v12, 48, v9')
    a('v_add_u32 v11, v11, v12')
    a('v_lshl_add_u32 v11, v10, 3, v11')
    a('v_cmp_eq_u32 vcc, 20, v8')
    a('v_mov_b32 v12, 24')
    a('v_cndmask_b32 v12, v8, v12, vcc')
    a('v_mul_u32_u24 v12, 96, v12')
    a('v_add_u32 v11, v11, v12')
    a('s_mov_b64 s[38:39], vcc')
    a('s_waitcnt vmcnt(6)')
    a('s_cmp_ge_u32 s3, 4')
    a('s_cbranch_scc0 %s_w1' % name)
    a('s_waitcnt vmcnt(4)')
    a.label(name + '_w1')
    acc = 48
    for ii in range(16):
        r = 16+2*ii
        if ii == 0:
            a('v_lshlrev_b32 v%d, 16, v%d' % (acc, r)); a('v_and_b32 v%d, 0xffff0000, v%d' % (acc+1, r))
            a('v_lshlrev_b32 v%d, 16, v%d' % (acc+2, r+1)); a('v_and_b32 v%d, 0xffff0000, v%d' % (acc+3, r+1))
        else:
            a('v_lshlrev_b32 v52, 16, v%d' % r); a('v_and_b32 v53, 0xffff0000, v%d' % r)
            a('v_lshlrev_b32 v54, 16, v%d' % (r+1)); a('v_and_b32 v55, 0xffff0000, v%d' % (r+1))
            a('v_pk_add_f32 v[48:49], v[48:49], v[52:53]')
            a('v_pk_add_f32 v[50:51], v[50:51], v[54:55]')
    a('v_cvt_pk_bf16_f32 v52, v48, v49')
    a('v_cvt_pk_bf16_f32 v53, v50, v51')
    a('ds_write_b64 v11, v[52:53] offset:%d' % KVT)
    a('s_and_b64 exec, exec, s[38:39]')
    a('s_cbranch_execz %s_zpad' % name)
    a('ds_write_b64 v11, v[52:53] offset:%d' % (KVT + 4*96))
    a.label(name + '_zpad')
    a('s_mov_b64 exec, s[36:37]')
    a('v_subrev_u32 v5, 420, v0')
    a('v_cmp_gt_u32 vcc, 88, v5')
    a('s_and_saveexec_b64 s[36:37], vcc')
    a('s_cbranch_execz %s_zp2' % name)
    a('v_cmp_le_u32 vcc, 44, v5')
    a('v_cndmask_b32 v6, 0, 1, vcc')
    a('v_mul_u32_u24 v7, 44, v6')
    a('v_sub_u32 v7, v5, v7')
    a('v_lshrrev_b32 v8, 1, v7')
    a('v_and_b32 v9, 1, v7')
    a('v_subrev_u32 v10, 20, v8')
    a('v_lshl_add_u32 v10, v10, 2, 24')
    a('v_cmp_gt_u32 vcc, 20, v8')
    a('v_cndmask_b32 v10, v10, v8, vcc')
    a('v_mul_u32_u24 v10, 96, v10')
    a('v_mul_u32_u24 v6, 3072, v6')
    a('v_mul_u32_u24 v9, 48, v9')
    a('v_add3_u32 v10, v10, v6, v9')
    a('v_mov_b32 v12, 0'); a('v_mov_b32 v13, 0')
    a('ds_write_b64 v10, v[12:13] offset:%d' % (KVT+40))
    a.label(name + '_zp2')
    a('s_mov_b64 exec, s[36:37]')
    a('s_cmp_ge_u32 s3, 4')
    a('s_cbranch_scc1 %s_cs2' % name)
    a('s_waitcnt vmcnt(0) lgkmcnt(0)')
    a('s_barrier')
    a('s_lshr_b32 s32, s3, 1')
    a('s_and_b32 s33, s3, 1')
    a('v_and_b32 v2, 31, v1')
    a('v_lshrrev_b32 v3, 5, v1')
    a('v_mul_u32_u24 v4, 96, v2')
    a('v_mul_u32_u24 v5, 48, v3')
    a('v_add_u32 v4, v4, v5')
    a('s_mul_i32 s34, s33, 3072')
    a('v_add_u32 v4, s34, v4')
    for s in range(3):
        a('ds_read_b128 %s, v4 offset:%d' % (vr(64+4*s,4), KVT + 16*s))
    a('s_waitcnt lgkmcnt(0)')
    OA = [16, 32]
    for tt in range(2):
        for s in range(3):
            a('v_mfma_f32_32x32x16_bf16 %s, %s, %s, %s' % (vr(OA[tt],16), vr(64+4*s,4), vr(BQ[tt]+4*s,4), '0' if s == 0 else vr(OA[tt],16)))
    a('v_lshrrev_b32 v5, 4, v2')
    a('v_and_b32 v6, 15, v2')
    a('v_mul_u32_u24 v7, %d, v5' % (20*1024))
    a('v_lshl_add_u32 v7, v6, 4, v7')
    a('v_lshl_add_u32 v8, v3, 8, v7')
    a('s_lshl_b32 s34, s4, 3')
    a('s_lshl_b32 s35, s32, 2')
    a('s_add_u32 s34, s34, s35')
    a('s_mul_i32 s34, s34, %d' % (20*1024))
    a('s_add_u32 s34, s34, %d' % WS_OF)
    a('s_lshl_b32 s35, s6, 10')
    a('s_add_u32 s40, s34, s35')
    a('s_lshl_b32 s35, s33, 9')
    a('s_add_u32 s40, s40, s35')
    a('s_lshr_b32 s35, s6, 2')
    a('s_add_u32 s35, s35, 16')
    a('s_lshl_b32 s35, s35, 10')
    a('s_add_u32 s41, s34, s35')
    a('s_and_b32 s35, s6, 3')
    a('s_lshl_b32 s35, s35, 8')
    a('s_add_u32 s41, s41, s35')
    a('s_lshl_b32 s35, s33, 3')
    a('s_add_u32 s41, s41, s35')
    for tt in range(2):
        o = OA[tt]
        a('v_add_f32 v10, 0x358637bd, v%d' % (o+12))
        a('v_rcp_f32 v10, v10')
        for p in range(6):
            a('v_pk_mul_f32 %s, %s, v[10:11] op_sel_hi:[1,0]' % (vr(o+2*p,2), vr(o+2*p,2)))
        for p in range(6):
            a('v_cvt_pk_bf16_f32 v%d, v%d, v%d' % (48+8*tt+p, o+2*p, o+2*p+1))
        a('s_add_u32 s35, s40, %d' % (tt*2*20*1024))
        a('buffer_store_dwordx4 %s, v8, s[20:23], s35 offen' % vr(48+8*tt,4))
        a('s_add_u32 s35, s41, %d' % (tt*2*20*1024))
        a('s_mov_b32 exec_hi, 0')
        a('buffer_store_dwordx2 %s, v7, s[20:23], s35 offen' % vr(52+8*tt,2))
        a('s_mov_b64 exec, -1')
    a('s_branch %s_end' % name)
    a.label(name + '_cs2')
    a('s_waitcnt vmcnt(0)')
    a('v_and_b32 v5, 127, v0')
    a('v_cmp_gt_u32 vcc, 120, v5')
    a('s_and_saveexec_b64 s[36:37], vcc')
    for e in range(4):
        for r in range(4):
            src = 64+4*r+e
            if r == 0:
                a('v_lshlrev_b32 v%d, 16, v%d' % (80+2*e, src)); a('v_and_b32 v%d, 0xffff0000, v%d' % (81+2*e, src))
            else:
                a('v_lshlrev_b32 v90, 16, v%d' % src); a('v_and_b32 v91, 0xffff0000, v%d' % src)
                a('v_pk_add_f32 %s, %s, v[90:91]' % (vr(80+2*e,2), vr(80+2*e,2)))
    a('s_cmp_ge_u32 s3, 6')
    a('s_cselect_b32 s34, 3840, 0')
    a('v_mul_u32_u24 v6, 5462, v5')
    a('v_lshrrev_b32 v6, 16, v6')
    a('v_mul_u32_u24 v7, 12, v6')
    a('v_sub_u32 v7, v5, v7')
    a('v_mul_u32_u24 v6, 384, v6')
    a('v_lshl_add_u32 v6, v7, 5, v6')
    a('v_add_u32 v6, s34, v6')
    a('ds_write_b128 v6, v[80:83] offset:%d' % CT)
    a('ds_write_b128 v6, v[84:87] offset:%d' % (CT+16))
    a('s_mov_b64 exec, s[36:37]')
    a('s_waitcnt lgkmcnt(0)')
    a('s_barrier')
    a('v_subrev_u32 v5, 256, v0')
    a('v_cmp_gt_u32 vcc, 192, v5')
    a('s_and_saveexec_b64 s[36:37], vcc')
    a('s_cbranch_execz %s_end' % name)
    a('v_cmp_le_u32 vcc, 96, v5')
    a('v_cndmask_b32 v6, 0, 1, vcc')
    a('v_mul_u32_u24 v6, %d, v6' % (3840-96*4))
    a('v_lshl_add_u32 v6, v5, 2, v6')
    for rg in range(10):
        a('ds_read_b32 v%d, v6 offset:%d' % (16+rg, CT + rg*384))
    a('s_waitcnt lgkmcnt(0)')
    for rg in range(1, 10):
        a('v_add_f32 v16, v16, v%d' % (16+rg))
    a('s_lshl_b32 s34, s5, 4')
    a('s_add_u32 s34, s34, s4')
    a('s_mul_i32 s34, s34, 768')
    a('s_add_u32 s34, s34, %d' % WS_CSP)
    a('v_lshlrev_b32 v6, 2, v5')
    a('buffer_store_dword v16, v6, s[20:23], s34 offen')
```

```python
from common import *
from k1 import halfsum
WOB = 0; XT = 102400
K3_LDS = 112640

def pat10(a, base, tmp):
    for p in range(5):
        a('v_add_u32 v%d, %d, v1' % (tmp, 64*p))
        a('v_mul_u32_u24 v%d, 6554, v%d' % (tmp+1, tmp))
        a('v_lshrrev_b32 v%d, 16, v%d' % (tmp+1, tmp+1))
        a('v_mul_u32_u24 v%d, 10, v%d' % (tmp+2, tmp+1))
        a('v_sub_u32 v%d, v%d, v%d' % (tmp+2, tmp, tmp+2))
        a('v_mul_u32_u24 v%d, 1280, v%d' % (tmp+1, tmp+1))
        a('v_lshl_add_u32 v%d, v%d, 4, v%d' % (base+p, tmp+2, tmp+1))

def rowsum4(a, r, tmp):
    halfsum(a, r, tmp)
    a('v_mov_b32 v%d, v%d' % (tmp, r))
    a('v_permlane16_swap_b32 v%d, v%d' % (r, tmp))
    a('v_add_f32 v%d, v%d, v%d' % (r, r, tmp))

def k3(a, name):
    entry(a, name)
    a('s_load_dwordx2 s[24:25], s[0:1], %d' % KA_X)
    a('s_load_dwordx2 s[26:27], s[0:1], %d' % KA_WO)
    a('s_load_dwordx2 s[30:31], s[0:1], %d' % KA_WS)
    a('v_lshrrev_b32 v2, 6, v0')
    a('v_and_b32 v1, 63, v0')
    a('v_readfirstlane_b32 s3, v2')
    wgmap(a, 4, 5)
    a('s_and_b32 s6, s5, 1')
    a('s_lshr_b32 s7, s5, 1')
    a('s_waitcnt lgkmcnt(0)')
    srd(a, 8, 24, SZ_X); srd(a, 12, 26, SZ_WO); srd(a, 20, 30, SZ_WS)
    a('s_cmp_ge_u32 s3, 4')
    a('s_cbranch_scc1 %s_loader' % name)
    p3_consumer(a, name)
    a('s_branch %s_end' % name)
    a.label(name + '_loader')
    a('s_sub_u32 s32, s3, 4')
    pat10(a, 10, 2)
    a('s_mul_i32 s34, s7, 160')
    a('s_mul_i32 s35, s32, %d' % (32*1280))
    a('s_add_u32 s35, s35, s34')
    a('s_mul_i32 s38, s32, 5120')
    for M in range(5):
        for p in range(5):
            a('s_add_u32 s42, s35, %d' % (M*128*1280))
            a('s_add_u32 m0, s38, %d' % (WOB + M*20480 + p*1024))
            a('buffer_load_dwordx4 v%d, s[12:15], s42 offen lds' % (10+p))
    a('s_cmp_ge_u32 s32, 2')
    a('s_cbranch_scc1 %s_nox' % name)
    a('s_lshl_b32 s36, s4, 7')
    a('s_lshl_b32 s37, s6, 6')
    a('s_add_u32 s36, s36, s37')
    a('s_lshl_b32 s37, s32, 5')
    a('s_add_u32 s36, s36, s37')
    a('s_mul_i32 s36, s36, 1280')
    a('s_add_u32 s36, s36, s34')
    for p in range(5):
        a('s_add_u32 m0, s38, %d' % (XT + p*1024))
        a('buffer_load_dwordx4 v%d, s[8:11], s36 offen lds' % (10+p))
    a.label(name + '_nox')
    a('s_waitcnt vmcnt(0)')
    a('s_barrier')
    a.label(name + '_end')
    a('s_endpgm')

OFR = 100
ACC3 = 16
AR = 40
def p3_addr(a):
    a('v_lshrrev_b32 v4, 4, v1')
    a('v_bfe_u32 v5, v1, 2, 2')
    a('v_and_b32 v6, 3, v1')
    a('v_lshrrev_b32 v7, 1, v4')
    a('v_mul_u32_u24 v7, 20, v7')
    a('v_and_b32 v8, 1, v4')
    a('v_lshl_add_u32 v7, v8, 2, v7')
    a('v_add_u32 v7, v7, v5')
    a('v_mul_u32_u24 v7, 160, v7')
    a('v_lshl_add_u32 v72, v6, 3, v7')
    a('v_add_u32 v73, 51200, v72')
    a('v_mul_u32_u24 v7, 40, v4')
    a('v_add_u32 v7, v7, v5')
    a('v_add_u32 v7, 16, v7')
    a('v_mul_u32_u24 v7, 160, v7')
    a('v_lshl_add_u32 v74, v6, 3, v7')
    a('v_add_u32 v75, 51200, v74')

def p3_reads(a, n):
    k, t5 = divmod(n, 5)
    buf = AR + 4*(n % 8)
    for h in range(2):
        if k < 16:
            reg = 72 if k < 8 else 73
            off = (40*(k % 8) + 8*h)*160 + 32*t5
        else:
            kk = k-16
            reg = 74 if kk < 2 else 75
            off = (160*(kk % 2) + 20*h)*160 + 32*t5
        a('ds_read_b64_tr_b16 %s, v%d offset:%d' % (vr(buf+2*h,2), reg, WOB + off))

def p3_consumer(a, name):
    a('s_lshl_b32 s34, s4, 3')
    a('s_lshl_b32 s35, s6, 2')
    a('s_add_u32 s34, s34, s35')
    a('s_add_u32 s34, s34, s3')
    a('s_mul_i32 s34, s34, %d' % (20*1024))
    a('s_add_u32 s34, s34, %d' % WS_OF)
    a('v_lshlrev_b32 v8, 4, v1')
    for k in range(20):
        a('s_add_u32 s35, s34, %d' % (k*1024))
        a('buffer_load_dwordx4 %s, v8, s[20:23], s35 offen' % vr(OFR+4*k,4))
    p3_addr(a)
    a('s_barrier')
    D = 7
    for n in range(D): p3_reads(a, n)
    for n in range(100):
        k, t5 = divmod(n, 5)
        if t5 == 0: a('s_waitcnt vmcnt(%d)' % (19-k))
        rem = min(D-1, 99-n)
        a('s_waitcnt lgkmcnt(%d)' % (2*rem))
        buf = AR + 4*(n % 8)
        a('v_mfma_f32_16x16x32_bf16 %s, %s, %s, %s' % (vr(ACC3+4*t5,4), vr(buf,4), vr(OFR+4*k,4), '0' if k == 0 else vr(ACC3+4*t5,4)))
        if n+D < 100: p3_reads(a, n+D)
    p3_epilogue(a, name)

def p3_epilogue(a, name):
    a('v_and_b32 v2, 15, v1')
    a('v_lshrrev_b32 v4, 4, v1')
    a('s_lshl_b32 s34, s3, 4')
    a('v_add_u32 v5, s34, v2')
    a('v_mul_u32_u24 v5, 160, v5')
    a('v_lshl_add_u32 v5, v4, 3, v5')
    a('v_add_u32 v5, %d, v5' % XT)
    for t5 in range(5):
        a('ds_read_b64 %s, v5 offset:%d' % (vr(76+2*t5,2), 32*t5))
    a('s_waitcnt lgkmcnt(0)')
    for t5 in range(5):
        for e in range(2):
            src = 76+2*t5+e
            a('v_lshlrev_b32 v10, 16, v%d' % src); a('v_and_b32 v11, 0xffff0000, v%d' % src)
            a('v_pk_add_f32 %s, %s, v[10:11]' % (vr(ACC3+4*t5+2*e,2), vr(ACC3+4*t5+2*e,2)))
    for t5 in range(5):
        for e in range(2):
            a('v_cvt_pk_bf16_f32 v%d, v%d, v%d' % (86+2*t5+e, ACC3+4*t5+2*e, ACC3+4*t5+2*e+1))
    a('v_pk_add_f32 v[10:11], %s, %s' % (vr(ACC3,2), vr(ACC3+2,2)))
    a('v_pk_mul_f32 v[12:13], %s, %s' % (vr(ACC3,2), vr(ACC3,2)))
    a('v_pk_fma_f32 v[12:13], %s, %s, v[12:13]' % (vr(ACC3+2,2), vr(ACC3+2,2)))
    for p in range(2, 10):
        a('v_pk_add_f32 v[10:11], v[10:11], %s' % vr(ACC3+2*p,2))
        a('v_pk_fma_f32 v[12:13], %s, %s, v[12:13]' % (vr(ACC3+2*p,2), vr(ACC3+2*p,2)))
    a('v_add_f32 v10, v10, v11')
    a('v_add_f32 v11, v12, v13')
    rowsum4(a, 10, 12)
    rowsum4(a, 11, 12)
    a('s_lshl_b32 s34, s4, 2')
    a('s_lshl_b32 s35, s6, 1')
    a('s_add_u32 s34, s34, s35')
    a('s_lshr_b32 s35, s3, 1')
    a('s_add_u32 s34, s34, s35')
    a('s_mul_i32 s34, s34, 40')
    a('s_mul_i32 s35, s7, 5')
    a('s_add_u32 s34, s34, s35')
    a('s_lshl_b32 s34, s34, 10')
    a('s_add_u32 s34, s34, %d' % WS_HF)
    a('s_and_b32 s35, s3, 1')
    a('s_lshl_b32 s35, s35, 8')
    a('s_add_u32 s34, s34, s35')
    a('v_lshrrev_b32 v6, 1, v4')
    a('v_lshlrev_b32 v6, 9, v6')
    a('v_lshl_add_u32 v6, v2, 4, v6')
    a('v_and_b32 v7, 1, v4')
    a('v_lshl_add_u32 v6, v7, 3, v6')
    for t5 in range(5):
        a('s_add_u32 s35, s34, %d' % (t5*1024))
        a('buffer_store_dwordx2 %s, v6, s[20:23], s35 offen' % vr(86+2*t5,2))
    a('s_lshl_b32 s34, s4, 3')
    a('s_add_u32 s34, s34, s7')
    a('s_lshl_b32 s34, s34, 7')
    a('s_lshl_b32 s35, s6, 6')
    a('s_add_u32 s34, s34, s35')
    a('s_lshl_b32 s35, s3, 4')
    a('s_add_u32 s34, s34, s35')
    a('s_lshl_b32 s34, s34, 3')
    a('s_add_u32 s34, s34, %d' % WS_STAT)
    a('v_lshlrev_b32 v6, 3, v2')
    a('s_mov_b64 exec, 0xffff')
    a('buffer_store_dwordx2 v[10:11], v6, s[20:23], s34 offen')
    a('s_mov_b64 exec, -1')
```

```python
from common import *
XR4 = 0
WR4 = 49152
WSL = 24832
ST4 = WR4 + 3*WSL
CP4 = ST4 + 8192
CF4 = CP4 + 12288
K4_LDS = CF4 + 768
NS4 = 3

def k4(a, name):
    entry(a, name)
    a('s_load_dwordx4 s[24:27], s[0:1], %d' % KA_WG)
    a('s_load_dwordx2 s[30:31], s[0:1], %d' % KA_WS)
    a('v_lshrrev_b32 v2, 6, v0')
    a('v_and_b32 v1, 63, v0')
    a('v_readfirstlane_b32 s3, v2')
    wgmap(a, 4, 5)
    a('s_waitcnt lgkmcnt(0)')
    srd(a, 20, 30, SZ_WS)
    a('s_cmp_ge_u32 s3, 4')
    a('s_cbranch_scc1 %s_loader' % name)
    p4_consumer(a, name)
    a('s_branch %s_end' % name)
    a.label(name + '_loader')
    p4_loader(a, name)
    a.label(name + '_end')
    a('s_endpgm')

def p4_loader(a, name):
    a('s_sub_u32 s32, s3, 4')
    a('s_cmp_ge_u32 s32, 2')
    a('s_cselect_b32 s12, s26, s24')
    a('s_cselect_b32 s13, s27, s25')
    a('s_mov_b32 s14, 0x%x' % SZ_WG)
    a('s_mov_b32 s15, 0x20000')
    for p in range(3):
        a('v_add_u32 v2, %d, v1' % (64*p))
        a('v_mul_u32_u24 v3, 5462, v2')
        a('v_lshrrev_b32 v3, 16, v3')
        a('v_mul_u32_u24 v4, 12, v3')
        a('v_sub_u32 v4, v2, v4')
        a('v_mul_u32_u24 v3, 3072, v3')
        a('v_lshl_add_u32 v%d, v4, 4, v3' % (10+p))
    a('v_lshlrev_b32 v13, 4, v1')
    a('s_and_b32 s33, s32, 1')
    a('s_mul_i32 s36, s33, %d' % (32*3072))
    a('s_mul_i32 s37, s5, 192')
    a('s_add_u32 s36, s36, s37')
    a('s_lshr_b32 s37, s32, 1')
    a('s_mul_i32 s37, s37, 12320')
    a('s_mul_i32 s38, s33, 6144')
    a('s_add_u32 s37, s37, s38')
    a('s_lshl_b32 s38, s4, 2')
    a('s_add_u32 s38, s38, s32')
    a('s_mul_i32 s38, s38, 40960')
    a('s_add_u32 s38, s38, %d' % WS_HF)
    a('s_lshl_b32 s39, s32, 12')
    a('s_lshl_b32 s40, s4, 13')
    a('s_lshl_b32 s41, s32, 11')
    a('s_add_u32 s40, s40, s41')
    a('s_add_u32 s40, s40, %d' % WS_STAT)
    for p in range(2):
        a('s_add_u32 s42, s40, %d' % (p*1024))
        a('s_add_u32 m0, s41, %d' % (ST4 + p*1024))
        a('buffer_load_dwordx4 v13, s[20:23], s42 offen lds')
    a('s_mul_i32 s40, s5, 12288')
    a('s_mul_i32 s41, s32, 3072')
    a('s_add_u32 s40, s40, s41')
    a('s_add_u32 s40, s40, %d' % WS_CSP)
    for p in range(3):
        a('s_add_u32 s42, s40, %d' % (p*1024))
        a('s_add_u32 m0, s41, %d' % (CP4 + p*1024))
        a('buffer_load_dwordx4 v13, s[20:23], s42 offen lds')
    def issue(st):
        slot = st % NS4
        for ks in range(4):
            a('s_add_u32 s42, s38, %d' % ((4*st+ks)*1024))
            a('s_add_u32 m0, s39, %d' % (XR4 + slot*16384 + ks*1024))
            a('buffer_load_dwordx4 v13, s[20:23], s42 offen lds')
        for p in range(6):
            a('s_add_u32 s42, s36, %d' % ((st*64 + 16*(p//3))*3072))
            a('s_add_u32 m0, s37, %d' % (WR4 + slot*WSL + p*1024))
            a('buffer_load_dwordx4 v%d, s[12:15], s42 offen lds' % (10 + p % 3))
    for st in range(NS4): issue(st)
    a('s_waitcnt vmcnt(%d)' % (10*(NS4-1)))
    a('s_barrier')
    a('v_subrev_u32 v5, 256, v0')
    a('v_cmp_gt_u32 vcc, 192, v5')
    a('s_and_saveexec_b64 s[44:45], vcc')
    a('s_cbranch_execz %s_nocs' % name)
    a('v_lshlrev_b32 v6, 2, v5')
    a('v_add_u32 v6, %d, v6' % CP4)
    for ii in range(16):
        a('ds_read_b32 v%d, v6 offset:%d' % (16+ii, ii*768))
        if ii == 11: a('s_waitcnt lgkmcnt(4)')
    a('s_waitcnt lgkmcnt(0)')
    for ii in range(1, 16):
        a('v_add_f32 v16, v16, v%d' % (16+ii))
    a('ds_write_b32 v6, v16 offset:%d' % (CF4-CP4))
    a('s_waitcnt lgkmcnt(0)')
    a.label(name + '_nocs')
    a('s_mov_b64 exec, s[44:45]')
    for s in range(10):
        if s+1 <= 9:
            later = min(s+NS4-1, 9) - (s+1)
            a('s_waitcnt vmcnt(%d)' % (10*later))
        a('s_barrier')
        if s+NS4 <= 9: issue(s+NS4)

ACC4 = 16
FR4 = 112
AX4 = 152; AW4 = 153
def acc4(tt, t): return ACC4 + (3*tt+t)*16
def xf4(b, tt): return FR4 + 20*b + 4*tt
def wf4(b, t): return FR4 + 20*b + 8 + 4*t

def p4_consumer(a, name):
    a('s_lshr_b32 s32, s3, 1')
    a('s_and_b32 s33, s3, 1')
    a('s_lshl_b32 s34, s32, 13')
    a('v_lshl_add_u32 v%d, v1, 4, s34' % AX4)
    a('v_lshrrev_b32 v4, 4, v1')
    a('v_bfe_u32 v5, v1, 2, 2')
    a('v_and_b32 v6, 3, v1')
    a('v_lshrrev_b32 v7, 1, v4')
    a('v_lshl_add_u32 v7, v7, 3, v5')
    a('v_mul_u32_u24 v7, 192, v7')
    a('v_lshl_add_u32 v7, v6, 3, v7')
    a('s_mul_i32 s34, s33, 96')
    a('s_add_u32 s34, s34, %d' % WR4)
    a('v_add_u32 v7, s34, v7')
    a('v_and_b32 v8, 1, v4')
    a('v_lshl_add_u32 v%d, v8, 5, v7' % AW4)
    a('v_add_u32 v%d, 12320, v%d' % (AW4+1, AW4))
    a('v_mul_u32_u24 v8, 12320, v8')
    a('v_add_u32 v8, v8, v7')
    a('v_add_u32 v%d, 64, v8' % (AW4+2))
    a('s_barrier')
    def reads(s, ks, b):
        slot = s % NS4
        for tt in range(2):
            a('ds_read_b128 %s, v%d offset:%d' % (vr(xf4(b,tt),4), AX4, XR4 + slot*16384 + tt*4096 + ks*1024))
        for t in range(3):
            for h in range(2):
                a('ds_read_b64_tr_b16 %s, v%d offset:%d' % (vr(wf4(b,t)+2*h,2), AW4+t, slot*WSL + ks*3072 + h*768))
    reads(0, 0, 0)
    for s in range(10):
        for ks in range(4):
            b = (4*s+ks) & 1
            if ks < 3:
                a('s_waitcnt lgkmcnt(0)')
                reads(s, ks+1, b^1)
            else:
                a('s_waitcnt lgkmcnt(0)')
                a('s_barrier')
                if s < 9: reads(s+1, 0, b^1)
            first = (s == 0 and ks == 0)
            for tt in range(2):
                for t in range(3):
                    c = '0' if first else vr(acc4(tt,t),16)
                    a('v_mfma_f32_32x32x16_bf16 %s, %s, %s, %s' % (vr(acc4(tt,t),16), vr(wf4(b,t),4), vr(xf4(b,tt),4), c))
    p4_epilogue(a, name)

def p4_epilogue(a, name):
    a('v_and_b32 v2, 31, v1')
    a('v_lshrrev_b32 v3, 5, v1')
    a('s_lshl_b32 s34, s32, 9')
    a('s_add_u32 s34, s34, %d' % ST4)
    a('v_lshl_add_u32 v4, v2, 3, s34')
    SB = 112
    for tt in range(2):
        for c in range(8):
            a('ds_read_b64 %s, v4 offset:%d' % (vr(SB+16*tt+2*c,2), c*1024 + tt*256))
        a('s_waitcnt lgkmcnt(0)')
    a('s_mul_i32 s34, s33, 192')
    a('s_add_u32 s34, s34, %d' % CF4)
    a('v_lshl_add_u32 v5, v3, 4, s34')
    CG, CU = 160, 184
    for q in range(6):
        a('ds_read_b128 %s, v5 offset:%d' % (vr(CG+4*q,4), q*32))
        a('ds_read_b128 %s, v5 offset:%d' % (vr(CU+4*q,4), 384 + q*32))
    a('s_mov_b32 s36, 0x3acccccd')
    NM = [6, 8]; R2 = [10, 12]
    for tt in range(2):
        b = SB+16*tt
        for c in range(1, 8):
            a('v_pk_add_f32 %s, %s, %s' % (vr(b,2), vr(b,2), vr(b+2*c,2)))
        a('v_mul_f32 v14, s36, v%d' % b)
        a('v_mul_f32 v15, s36, v%d' % (b+1))
        a('v_fma_f32 v15, -v14, v14, v15')
        a('v_max_f32 v15, 0, v15')
        a('v_add_f32 v15, 0x3727c5ac, v15')
        a('v_rcp_f32 v%d, v15' % R2[tt])
        a('v_sub_f32 v%d, 0, v14' % NM[tt])
    a('s_waitcnt lgkmcnt(0)')
    a('v_lshrrev_b32 v4, 4, v2')
    a('v_mul_u32_u24 v4, %d, v4' % (48*1024))
    a('v_and_b32 v5, 15, v2')
    a('v_lshl_add_u32 v4, v5, 4, v4')
    a('v_lshl_add_u32 v4, v3, 8, v4')
    a('s_lshl_b32 s34, s4, 3')
    a('s_lshl_b32 s35, s32, 2')
    a('s_add_u32 s34, s34, s35')
    a('s_mul_i32 s34, s34, 48')
    a('s_mul_i32 s35, s5, 3')
    a('s_add_u32 s34, s34, s35')
    a('s_lshl_b32 s34, s34, 10')
    a('s_mul_i32 s35, s33, %d' % (6*256))
    a('s_add_u32 s34, s34, s35')
    a('s_add_u32 s34, s34, %d' % WS_HID)
    HP = 208
    for tt in range(2):
        for q in range(6):
            if q < 4: g = acc4(tt,0)+4*q; u = acc4(tt,1)+4*q
            else: g = acc4(tt,2)+4*(q-4); u = acc4(tt,2)+8+4*(q-4)
            for e in range(2):
                a('v_pk_fma_f32 %s, %s, %s, %s op_sel_hi:[1,0,1]' % (vr(g+2*e,2), vr(CG+4*q+2*e,2), vr(NM[tt],2), vr(g+2*e,2)))
                a('v_pk_fma_f32 %s, %s, %s, %s op_sel_hi:[1,0,1]' % (vr(u+2*e,2), vr(CU+4*q+2*e,2), vr(NM[tt],2), vr(u+2*e,2)))
            for e in range(4):
                a('v_max_f32 v%d, 0, v%d' % (g+e, g+e))
            for e in range(2):
                a('v_pk_mul_f32 %s, %s, %s op_sel_hi:[1,0]' % (vr(u+2*e,2), vr(u+2*e,2), vr(R2[tt],2)))
            for e in range(2):
                a('v_pk_mul_f32 %s, %s, %s' % (vr(g+2*e,2), vr(g+2*e,2), vr(u+2*e,2)))
            for e in range(2):
                a('v_cvt_pk_bf16_f32 v%d, v%d, v%d' % (HP+12*tt+2*q+e, g+2*e, g+2*e+1))
        for c3 in range(3):
            a('s_add_u32 s35, s34, %d' % (tt*2*48*1024 + c3*512))
            a('buffer_store_dwordx4 %s, v4, s[20:23], s35 offen' % vr(HP+12*tt+4*c3,4))
```

```python
from common import *
from k3 import pat10
WR5 = 0; SL5 = 20480; NS5 = 6
OT5 = NS5*SL5
K5_LDS = OT5 + 10240

def k5(a, name):
    entry(a, name)
    a('s_load_dwordx4 s[24:27], s[0:1], %d' % KA_WD)
    a('s_load_dwordx2 s[30:31], s[0:1], %d' % KA_WS)
    a('v_lshrrev_b32 v2, 6, v0')
    a('v_and_b32 v1, 63, v0')
    a('v_readfirstlane_b32 s3, v2')
    wgmap(a, 4, 5)
    a('s_and_b32 s6, s5, 1')
    a('s_lshr_b32 s7, s5, 1')
    a('s_waitcnt lgkmcnt(0)')
    srd(a, 12, 24, SZ_WD); srd(a, 16, 26, SZ_OUT); srd(a, 20, 30, SZ_WS)
    a('s_cmp_ge_u32 s3, 4')
    a('s_cbranch_scc1 %s_loader' % name)
    p5_consumer(a, name)
    a('s_branch %s_fin' % name)
    a.label(name + '_loader')
    p5_loader(a, name)
    a.label(name + '_fin')
    p5_final(a, name)
    a.label(name + '_end')
    a('s_endpgm')

def p5_loader(a, name):
    a('s_sub_u32 s32, s3, 4')
    pat10(a, 10, 2)
    a('s_mul_i32 s34, s7, 160')
    a('s_mul_i32 s35, s32, %d' % (32*1280))
    a('s_add_u32 s35, s35, s34')
    a('s_mul_i32 s38, s32, 5120')
    def issue(st):
        slot = st % NS5
        for p in range(5):
            a('s_add_u32 s42, s35, %d' % (st*128*1280))
            a('s_add_u32 m0, s38, %d' % (WR5 + slot*SL5 + p*1024))
            a('buffer_load_dwordx4 v%d, s[12:15], s42 offen lds' % (10+p))
    for st in range(NS5): issue(st)
    a('s_waitcnt vmcnt(%d)' % (5*(NS5-1)))
    a('s_barrier')
    for s in range(12):
        if s+1 <= 11:
            later = min(s+NS5-1, 11) - (s+1)
            a('s_waitcnt vmcnt(%d)' % (5*later))
        a('s_barrier')
        if s+NS5 <= 11: issue(s+NS5)

XB = 100
NB5 = 16
ACC5 = 16; AR5 = 40; HR = 76
def p5_consumer(a, name):
    a('s_lshl_b32 s34, s4, 3')
    a('s_lshl_b32 s35, s6, 2')
    a('s_add_u32 s34, s34, s35')
    a('s_add_u32 s34, s34, s3')
    a('s_mul_i32 s34, s34, %d' % (48*1024))
    a('s_add_u32 s40, s34, %d' % WS_HID)
    a('v_lshlrev_b32 v8, 4, v1')
    a('v_and_b32 v2, 15, v1')
    a('v_lshrrev_b32 v4, 4, v1')
    a('s_lshl_b32 s34, s4, 2')
    a('s_lshl_b32 s35, s6, 1')
    a('s_add_u32 s34, s34, s35')
    a('s_lshr_b32 s35, s3, 1')
    a('s_add_u32 s34, s34, s35')
    a('s_mul_i32 s34, s34, 40')
    a('s_mul_i32 s35, s7, 5')
    a('s_add_u32 s34, s34, s35')
    a('s_lshl_b32 s34, s34, 10')
    a('s_add_u32 s34, s34, %d' % WS_HF)
    a('s_and_b32 s35, s3, 1')
    a('s_lshl_b32 s35, s35, 8')
    a('s_add_u32 s34, s34, s35')
    a('v_lshrrev_b32 v6, 1, v4')
    a('v_lshlrev_b32 v6, 9, v6')
    a('v_lshl_add_u32 v6, v2, 4, v6')
    a('v_and_b32 v7, 1, v4')
    a('v_lshl_add_u32 v6, v7, 3, v6')
    for t5 in range(5):
        a('s_add_u32 s35, s34, %d' % (t5*1024))
        a('buffer_load_dwordx2 %s, v6, s[20:23], s35 offen' % vr(HR+2*t5,2))
    def bload(k):
        a('s_add_u32 s35, s40, %d' % (k*1024))
        a('buffer_load_dwordx4 %s, v8, s[20:23], s35 offen' % vr(XB+4*(k % NB5),4))
    PD = NB5-1
    for k in range(PD): bload(k)
    a('v_bfe_u32 v5, v1, 2, 2')
    a('v_and_b32 v9, 3, v1')
    a('v_lshrrev_b32 v7, 1, v4')
    a('v_lshlrev_b32 v7, 4, v7')
    a('v_and_b32 v10, 1, v4')
    a('v_lshl_add_u32 v7, v10, 2, v7')
    a('v_add_u32 v7, v7, v5')
    a('v_mul_u32_u24 v7, 160, v7')
    a('v_lshl_add_u32 v72, v9, 3, v7')
    a('v_add_u32 v73, %d, v72' % (3*SL5))
    a('s_barrier')
    def reads(n):
        k, t5 = divmod(n, 5)
        st, kk = divmod(k, 4)
        slot = st % NS5
        reg = 72 if slot < 3 else 73
        buf = AR5 + 4*(n % 8)
        for h in range(2):
            a('ds_read_b64_tr_b16 %s, v%d offset:%d' % (vr(buf+2*h,2), reg, WR5 + (slot % 3)*SL5 + (32*kk+8*h)*160 + 32*t5))
    D = 7
    N = 240
    issued = 0
    for n in range(D): reads(n)
    issued = D
    for n in range(N):
        k, t5 = divmod(n, 5)
        if t5 == 0:
            rem = min(PD-1, 47-k)
            a('s_waitcnt vmcnt(%d)' % rem)
        a('s_waitcnt lgkmcnt(%d)' % (2*(issued-(n+1))))
        buf = AR5 + 4*(n % 8)
        a('v_mfma_f32_16x16x32_bf16 %s, %s, %s, %s' % (vr(ACC5+4*t5,4), vr(buf,4), vr(XB+4*(k % NB5),4), '0' if k == 0 else vr(ACC5+4*t5,4)))
        if t5 == 4 and k+PD < 48: bload(k+PD)
        if issued < N:
            if issued % 20 == 0:
                a('s_waitcnt lgkmcnt(0)')
                a('s_barrier')
            reads(issued); issued += 1
    a('s_barrier')
    a('s_waitcnt vmcnt(0)')
    for t5 in range(5):
        for e in range(2):
            src = HR+2*t5+e
            a('v_lshlrev_b32 v10, 16, v%d' % src); a('v_and_b32 v11, 0xffff0000, v%d' % src)
            a('v_pk_add_f32 %s, %s, v[10:11]' % (vr(ACC5+4*t5+2*e,2), vr(ACC5+4*t5+2*e,2)))
            a('v_cvt_pk_bf16_f32 v%d, v%d, v%d' % (86+2*t5+e, ACC5+4*t5+2*e, ACC5+4*t5+2*e+1))
    a('s_lshl_b32 s34, s3, 4')
    a('v_add_u32 v5, s34, v2')
    a('v_mul_u32_u24 v5, 160, v5')
    a('v_lshl_add_u32 v5, v4, 3, v5')
    a('v_add_u32 v5, %d, v5' % OT5)
    for t5 in range(5):
        a('ds_write_b64 v5, %s offset:%d' % (vr(86+2*t5,2), 32*t5))
    a('s_waitcnt lgkmcnt(0)')

def p5_final(a, name):
    a('s_barrier')
    a('s_lshl_b32 s34, s4, 7')
    a('s_lshl_b32 s35, s6, 6')
    a('s_add_u32 s34, s34, s35')
    a('s_mul_i32 s34, s34, 1280')
    a('s_mul_i32 s35, s7, 160')
    a('s_add_u32 s34, s34, s35')
    for rep in range(2):
        if rep == 1:
            a('s_cmp_ge_u32 s3, 2')
            a('s_cbranch_scc1 %s_end' % name)
        a('s_lshl_b32 s35, s3, 6')
        a('s_add_u32 s35, s35, %d' % (512*rep))
        a('v_add_u32 v2, s35, v1')
        a('v_mul_u32_u24 v3, 6554, v2')
        a('v_lshrrev_b32 v3, 16, v3')
        a('v_mul_u32_u24 v4, 10, v3')
        a('v_sub_u32 v4, v2, v4')
        a('v_mul_u32_u24 v3, 1280, v3')
        a('v_lshl_add_u32 v3, v4, 4, v3')
        a('v_lshlrev_b32 v2, 4, v2')
        a('v_add_u32 v2, %d, v2' % OT5)
        a('ds_read_b128 v[8:11], v2')
        a('s_waitcnt lgkmcnt(0)')
        a('buffer_store_dwordx4 v[8:11], v3, s[16:19], s34 offen')
```

```python
import sys
from common import *
import k1, k2, k3, k4, k5
def build(kernels, path):
    a = Asm()
    hdr = []
    for (nm, fn, lds) in kernels:
        hdr.append('; @launch kernel=%s grid=(256,1,1) block=(512,1,1) lds=%d' % (nm, lds))
    a('.amdgcn_target "amdgcn-amd-amdhsa--gfx950"')
    for (nm, fn, lds) in kernels:
        fn(a, nm)
    txt = '\n'.join(hdr) + '\n' + a.text()
    for (nm, fn, lds) in kernels:
        txt += kd(nm)
    open(path, 'w').write(txt)
    print('wrote', path, len(txt), 'bytes; pads', a.npad)
ALL = [('k1_kernel', k1.k1, k1.K1_LDS), ('k2_kernel', k2.k2, k2.K2_LDS), ('k3_kernel', k3.k3, k3.K3_LDS),
       ('k4_kernel', k4.k4, k4.K4_LDS), ('k5_kernel', k5.k5, k5.K5_LDS)]
if __name__ == '__main__':
    build(ALL, 'multi.s')
```

```python
from build import *
def empty(a, name):
    entry(a, name)
    a.label(name + '_end')
    a('s_endpgm')
def build2(kernels, launches, path):
    a = Asm()
    hdr = ['; @launch kernel=%s grid=(%d,1,1) block=(%d,1,1) lds=%d' % l for l in launches]
    a('.amdgcn_target "amdgcn-amd-amdhsa--gfx950"')
    for (nm, fn, lds) in kernels: fn(a, nm)
    txt = '\n'.join(hdr) + '\n' + a.text()
    for (nm, fn, lds) in kernels: txt += kd(nm)
    open(path, 'w').write(txt)
base = [(nm, 256, 512, lds) for (nm, fn, lds) in ALL]
K = ALL + [('e_kernel', empty, 0)]
build2(K, base + [('e_kernel', 256, 512, 0)]*4, 'v_e4end.s')
build2(K, [('e_kernel', 256, 512, 0)]*4 + base, 'v_e4beg.s')
build2(K, base + [('e_kernel', 1, 64, 0)]*4, 'v_e4small.s')
build2(K, base + base, 'v_twice.s')
```

```python
import sys
from common import *
import k1, k2, k3, k4, k5
def build(kernels, path):
    a = Asm()
    hdr = []
    for (nm, fn, lds) in kernels:
        hdr.append('; @launch kernel=%s grid=(256,1,1) block=(512,1,1) lds=%d' % (nm, lds))
    a('.amdgcn_target "amdgcn-amd-amdhsa--gfx950"')
    for (nm, fn, lds) in kernels:
        fn(a, nm)
    a('L_text_end:')
    a('s_endpgm')
    txt = '\n'.join(hdr) + '\n' + a.text()
    for (nm, fn, lds) in kernels:
        txt += kd(nm)
    open(path, 'w').write(txt)
    print('wrote', path, len(txt), 'bytes; pads', a.npad)
ALL = [('k1_kernel', k1.k1, k1.K1_LDS), ('k2_kernel', k2.k2, k2.K2_LDS), ('k3_kernel', k3.k3, k3.K3_LDS),
       ('k4_kernel', k4.k4, k4.K4_LDS), ('k5_kernel', k5.k5, k5.K5_LDS)]
if __name__ == '__main__':
    import common
    if len(sys.argv) > 1 and sys.argv[1] == 'prof':
        common.PROF = True
        build(ALL, 'multi_prof.s')
    else:
        build(ALL, 'multi.s')
```

```python
from asmlib import *
KN = 'sequential_preLN__linear_kernel_hedgehog__glu_gated_reglu__prompt'
KA_X, KA_WQKV, KA_WPHI, KA_WO, KA_BX, KA_WG, KA_WU, KA_WD, KA_OUT, KA_DBG, KA_WS = [8*i for i in range(11)]
SZ_X = 2048*1280; SZ_WQKV = 640*3840; SZ_WPHI = 32*800; SZ_WO = 640*1280
SZ_WG = 640*3072; SZ_WD = 1536*1280; SZ_OUT = 2048*1280; SZ_WS = 1 << 28
WS_PHIQ = 0x0000000
WS_KVP  = 0x0600000
WS_OF   = 0x0700000
WS_HF   = 0x0A00000
WS_STAT = 0x0D00000
WS_CSP  = 0x0D40000
WS_HID  = 0x0E00000
WS_END  = 0x1400000
LOG2E = 0x3fb8aa3b

def srd(a, s, kaoff_reg, size):
    a('s_mov_b32 s%d, s%d' % (s, kaoff_reg))
    a('s_mov_b32 s%d, s%d' % (s+1, kaoff_reg+1))
    a('s_mov_b32 s%d, 0x%x' % (s+2, size))
    a('s_mov_b32 s%d, 0x20000' % (s+3))

def entry(a, name, nwg=256):
    a('.text')
    a('.globl %s' % name)
    a('.p2align 8')
    a('.type %s,@function' % name)
    a.label(name)
    a('s_cmp_ge_u32 s2, %d' % nwg)
    a('s_cbranch_scc1 %s_end' % name)

def kd(name, vgpr=256, sgpr=102, acc=256):
    return '''.section .rodata,"a"
.p2align 6
.amdhsa_kernel %s
  .amdhsa_next_free_vgpr %d
  .amdhsa_next_free_sgpr %d
  .amdhsa_accum_offset %d
  .amdhsa_group_segment_fixed_size 0
  .amdhsa_kernarg_size 88
  .amdhsa_user_sgpr_count 2
  .amdhsa_user_sgpr_kernarg_segment_ptr 1
  .amdhsa_system_sgpr_workgroup_id_x 1
.end_amdhsa_kernel
''' % (name, vgpr, sgpr, acc)

def wgmap(a, si, sj):
    a('s_and_b32 s%d, s2, 7' % si)
    a('s_lshl_b32 s%d, s%d, 1' % (si, si))
    a('s_bfe_u32 s%d, s2, 0x10003' % sj)
    a('s_add_u32 s%d, s%d, s%d' % (si, si, sj))
    a('s_lshr_b32 s%d, s2, 4' % sj)


PROF = False
WS_PROF = 0x2000000
def stamp(a, idx):
    if PROF:
        a('s_memrealtime s[%d:%d]' % (64+2*idx, 65+2*idx))
def prof_flush(a, kidx, nst, role, tag):
    if not PROF: return
    a('s_cmp_eq_u32 s3, %d' % (0 if role == 0 else 4))
    a('s_cbranch_scc0 L_prof_%s' % tag)
    a('s_waitcnt lgkmcnt(0)')
    a('s_mov_b64 exec, 1')
    a('s_lshl_b32 s60, s2, 7')
    a('s_add_u32 s60, s60, %d' % (WS_PROF + kidx*256*128 + role*64))
    a('v_mov_b32 v2, 0')
    for i in range(nst):
        a('v_mov_b32 v3, s%d' % (64+2*i))
        a('buffer_store_dword v3, v2, s[20:23], s60 offen offset:%d' % (4*i))
    a('s_mov_b64 exec, -1')
    a('L_prof_%s:' % tag)
```

```python
from common import *

CHUNKPOS = {0: [0,1,2,3,12], 1: [6,7,4,5,14], 2: [9,11,8,10,13]}
def wtab(t, half, hd):
    w = 0
    for idx4 in range(4):
        I = 4*t + idx4
        if I <= 4: sec, idx = (0 if half == 0 else 1), I
        elif half == 0: sec, idx = 2, I-5
        elif I <= 6: sec, idx = 2, I-2
        else: sec, idx = None, None
        if sec is None:
            val = (2*2+1) if hd == 0 else 0
        else:
            u = 5*hd + idx
            val = CHUNKPOS[sec][u >> 1]*2 + (u & 1)
        w |= val << (8*idx4)
    return w

XR, WR = 0, 65536
PHI, ZERO, ST, CS = 131072, 135168, 136192, 137216
K1_LDS = 138240
KVB = 0

def k1(a, name, standalone=True):
    entry(a, name)
    stamp(a, 0)
    a('s_load_dwordx4 s[24:27], s[0:1], %d' % KA_X)
    a('s_load_dwordx2 s[28:29], s[0:1], %d' % KA_WPHI)
    a('s_load_dwordx2 s[30:31], s[0:1], %d' % KA_WS)
    a('v_lshrrev_b32 v2, 6, v0')
    a('v_and_b32 v1, 63, v0')
    a('v_readfirstlane_b32 s3, v2')
    wgmap(a, 4, 5)
    a('s_xor_b32 s6, s5, 1')
    a('s_waitcnt lgkmcnt(0)')
    srd(a, 8, 24, SZ_X); srd(a, 12, 26, SZ_WQKV); srd(a, 16, 28, SZ_WPHI); srd(a, 20, 30, SZ_WS)
    a('s_cmp_ge_u32 s3, 4')
    a('s_cbranch_scc1 %s_loader' % name)
    k1_consumer(a, name)
    stamp(a, 5)
    prof_flush(a, 0, 6, 0, name+'c')
    a('s_branch %s_end' % name)
    a.label(name + '_loader')
    k1_loader(a, name)
    stamp(a, 3)
    prof_flush(a, 0, 4, 1, name+'l')
    a.label(name + '_end')
    a('s_endpgm')

NSLOT = 4
OPT = dict(codepf=False, wpf=False, rot=False)
def k1_prefetch(a, name):
    if OPT['codepf']:
        a('s_cmp_eq_u32 s32, 3')
        a('s_cbranch_scc0 %s_nocpf' % name)
        a('s_getpc_b64 s[46:47]')
        a.label(name + '_pc')
        a('s_sub_u32 s46, s46, %s_pc-%s' % (name, name))
        a('s_subb_u32 s47, s47, 0')
        a('s_bfe_u32 s44, s2, 0x30003')
        a('s_lshl_b32 s44, s44, 13')
        a('v_lshlrev_b32 v2, 7, v1')
        a('v_add_u32 v2, s44, v2')
        a('s_mov_b32 s45, L_text_end-%s' % name)
        a('v_cmp_gt_u32 vcc, s45, v2')
        a('s_and_saveexec_b64 s[48:49], vcc')
        a('s_cbranch_execz %s_nocpf2' % name)
        a('global_load_dword v3, v2, s[46:47]')
        a.label(name + '_nocpf2')
        a('s_mov_b64 exec, s[48:49]')
        a.label(name + '_nocpf')
    if OPT['wpf']:
        a('s_load_dwordx2 s[52:53], s[0:1], %d' % KA_WO)
        a('s_load_dwordx4 s[56:59], s[0:1], %d' % KA_WG)
        a('s_load_dwordx2 s[54:55], s[0:1], %d' % KA_WD)
        a('s_waitcnt lgkmcnt(0)')
        a('s_cmp_eq_u32 s32, 1'); a('s_cselect_b32 s52, s56, s52'); a('s_cselect_b32 s53, s57, s53')
        a('s_cmp_eq_u32 s32, 2'); a('s_cselect_b32 s52, s58, s52'); a('s_cselect_b32 s53, s59, s53')
        a('s_cmp_eq_u32 s32, 3'); a('s_cselect_b32 s52, s54, s52'); a('s_cselect_b32 s53, s55, s53')
        a('s_cmp_eq_u32 s32, 0')
        a('s_mov_b32 s44, 7680')
        a('s_cselect_b32 s44, 3200, s44')
        a('s_mul_i32 s45, s44, s2')
        a('v_lshlrev_b32 v2, 7, v1')
        a('v_cmp_gt_u32 vcc, s44, v2')
        a('v_add_u32 v2, s45, v2')
        a('s_and_saveexec_b64 s[48:49], vcc')
        a('global_load_dword v4, v2, s[52:53]')
        a('s_mov_b64 exec, s[48:49]')

def k1_loader(a, name):
    a('s_sub_u32 s32, s3, 4')
    a('v_lshrrev_b32 v2, 3, v1')
    a('v_and_b32 v3, 7, v1')
    a('v_lshrrev_b32 v4, 4, v1')
    a('s_and_b32 s33, s32, 1')
    a('s_lshl_b32 s33, s33, 2')
    a('v_add_u32 v4, s33, v4')
    a('v_xor_b32 v3, v3, v4')
    a('v_mul_u32_u24 v10, 1280, v2')
    a('v_lshl_add_u32 v10, v3, 4, v10')
    a('v_lshrrev_b32 v2, 4, v1')
    a('v_and_b32 v3, 15, v1')
    a('v_lshlrev_b32 v4, 2, v2')
    a('v_xor_b32 v3, v3, v4')
    a('v_and_b32 v4, 7, v3')
    a('v_lshlrev_b32 v4, 2, v4')
    a('v_cmp_le_u32 vcc, 8, v3')
    a('v_mov_b32 v5, 0x10323210')
    a('v_mov_b32 v6, 0x44441302')
    a('v_cndmask_b32 v5, v5, v6, vcc')
    a('v_bfe_u32 v5, v5, v4, 4')
    a('v_mov_b32 v6, 0x11110000')
    a('v_mov_b32 v7, 0x11202222')
    a('v_cndmask_b32 v6, v6, v7, vcc')
    a('v_bfe_u32 v6, v6, v4, 4')
    a('s_mul_i32 s34, s6, 80')
    a('s_mul_i32 s35, s5, 80')
    a('v_mov_b32 v7, s35')
    a('v_mov_b32 v8, s34')
    a('v_cmp_eq_u32 vcc, 0, v6')
    a('v_cndmask_b32 v7, v7, v8, vcc')
    a('v_mul_u32_u24 v11, 1280, v6')
    a('v_add_u32 v11, v11, v7')
    a('v_lshl_add_u32 v11, v5, 4, v11')
    a('v_mul_u32_u24 v2, 3840, v2')
    a('v_add_u32 v11, v11, v2')
    a('s_lshl_b32 s36, s4, 7')
    a('s_lshl_b32 s37, s32, 3')
    a('s_add_u32 s36, s36, s37')
    a('s_mul_i32 s36, s36, 1280')
    a('s_mul_i32 s37, s32, %d' % (4*3840))
    a('s_lshl_b32 s38, s32, 10')
    a('v_lshlrev_b32 v12, 4, v1')
    a('s_lshr_b32 s39, s32, 1')
    a('s_cmp_eq_u32 s39, 0')
    a('s_cselect_b32 s40, s6, s5')
    a('s_mul_i32 s40, s40, 1600')
    a('s_and_b32 s41, s32, 1')
    a('s_lshl_b32 s41, s41, 10')
    a('s_add_u32 s40, s40, s41')
    a('s_add_u32 m0, s38, %d' % PHI)
    a('buffer_load_dwordx4 v12, s[16:19], s40 offen lds')
    if OPT['rot']:
        a('s_and_b32 s43, s2, 7')
        a('s_mul_i32 s43, s43, 5')
        a('s_lshr_b32 s43, s43, 2')
    def issue(st):
        slot = st % NSLOT
        if OPT['rot']:
            a('s_add_u32 s44, s43, %d' % st)
            a('s_cmp_ge_u32 s44, 10')
            a('s_cselect_b32 s45, 10, 0')
            a('s_sub_u32 s44, s44, s45')
            a('s_lshl_b32 s45, s44, 7')
            a('s_add_u32 s45, s45, s36')
            a('s_mul_i32 s44, s44, %d' % (64*3840))
            a('s_add_u32 s44, s44, s37')
        for q in range(4):
            if OPT['rot']: a('s_add_u32 s42, s45, %d' % (q*32*1280))
            else: a('s_add_u32 s42, s36, %d' % (q*32*1280 + st*128))
            a('s_add_u32 m0, s38, %d' % (XR + slot*16384 + q*4096))
            a('buffer_load_dwordx4 v10, s[8:11], s42 offen lds')
            if OPT['rot']: a('s_add_u32 s42, s44, %d' % (q*16*3840))
            else: a('s_add_u32 s42, s37, %d' % ((st*64 + q*16)*3840))
            a('s_add_u32 m0, s38, %d' % (WR + slot*16384 + q*4096))
            a('buffer_load_dwordx4 v11, s[12:15], s42 offen lds')
    stamp(a, 1)
    for st in range(NSLOT): issue(st)
    k1_prefetch(a, name)
    npf = 2
    a('s_waitcnt vmcnt(%d)' % (8*(NSLOT-1)))
    stamp(a, 2)
    a('s_barrier')
    for s in range(10):
        if s+1 <= 9:
            later = min(s+NSLOT-1, 9) - (s+1)
            a('s_waitcnt vmcnt(%d)' % (8*later))
        a('s_barrier')
        if s+NSLOT <= 9: issue(s+NSLOT)

ACC, FR = 16, 80
AX, AW = 112, 120
SX, SQ = 122, 123
PA = 124
CS0, CS1, ONES = 148, 149, 150
NMEAN = [152, 154]; RSTD = [156, 158]
QB = [160, 176]
EX = 192
PK = [232, 80]
CSD = 80

def accr(tt, t): return ACC + (2*tt+t)*16
def xfr(b, tt): return FR + 16*b + 4*tt
def wfr(b, t): return FR + 16*b + 8 + 4*t

def k1_consumer(a, name):
    a('s_lshr_b32 s32, s3, 1')
    a('s_and_b32 s33, s3, 1')
    a('v_and_b32 v2, 31, v1')
    a('v_lshrrev_b32 v3, 5, v1')
    a('s_lshl_b32 s34, s32, 6')
    a('v_add_u32 v4, s34, v2')
    a('v_lshlrev_b32 v4, 7, v4')
    a('s_lshl_b32 s35, s33, 12')
    a('v_add_u32 v4, s35, v4')
    a('v_xor_b32 v7, 0x1000, v4')
    a('v_bfe_u32 v5, v2, 1, 3')
    a('v_xor_b32 v5, v5, v3')
    for ks in range(4):
        a('v_xor_b32 v6, %d, v5' % (2*ks))
        a('v_lshl_add_u32 v%d, v6, 4, v4' % (AX+ks))
        a('v_lshl_add_u32 v%d, v6, 4, v7' % (AX+4+ks))
    a('v_lshrrev_b32 v4, 4, v1')
    a('v_bfe_u32 v5, v1, 2, 2')
    a('v_and_b32 v6, 3, v1')
    a('v_and_b32 v7, 1, v4')
    a('v_lshlrev_b32 v7, 1, v7')
    a('v_lshrrev_b32 v8, 1, v6')
    a('v_add_u32 v7, v7, v8')
    a('v_lshlrev_b32 v7, 3, v7')
    a('v_and_b32 v8, 1, v6')
    a('v_cmp_eq_u32 vcc, 1, v8')
    a('v_lshrrev_b32 v9, 1, v4')
    a('v_lshlrev_b32 v9, 3, v9')
    a('v_add_u32 v9, v9, v5')
    a('v_lshlrev_b32 v9, 8, v9')
    a('v_lshlrev_b32 v10, 2, v5')
    a('s_cmp_eq_u32 s33, 0')
    for t in range(2):
        a('s_mov_b32 s34, 0x%x' % wtab(t,0,1))
        a('s_cselect_b32 s34, 0x%x, s34' % wtab(t,0,0))
        a('s_mov_b32 s35, 0x%x' % wtab(t,1,1))
        a('s_cselect_b32 s35, 0x%x, s35' % wtab(t,1,0))
        a('v_mov_b32 v11, s34')
        a('v_mov_b32 v12, s35')
        a('v_cndmask_b32 v11, v11, v12, vcc')
        a('v_bfe_u32 v11, v11, v7, 8')
        a('v_lshrrev_b32 v12, 1, v11')
        a('v_xor_b32 v12, v12, v10')
        a('v_and_b32 v11, 1, v11')
        a('v_lshlrev_b32 v11, 3, v11')
        a('v_lshl_add_u32 v11, v12, 4, v11')
        a('v_add_u32 v11, v11, v9')
        a('v_add_u32 v%d, %d, v11' % (AW+t, WR))
    a('v_mov_b32 v%d, 0x3f803f80' % ONES)
    for r in (SX, SQ, CS0, CS1): a('v_mov_b32 v%d, 0' % r)
    a('v_mov_b32 v12, 0'); a('v_mov_b32 v13, 0'); a('v_mov_b32 v14, 0'); a('v_mov_b32 v15, 0')
    a('v_lshlrev_b32 v11, 4, v1')
    a('v_add_u32 v11, %d, v11' % ZERO)
    a('ds_write_b128 v11, v[12:15]')
    a('v_lshrrev_b32 v11, 1, v4')
    a('v_cmp_eq_u32 s[36:37], v11, v8')
    a('v_lshrrev_b32 v12, 3, v7')
    a('v_lshlrev_b32 v13, 11, v8')
    a('v_mul_u32_u24 v14, 40, v5')
    a('v_add_u32 v13, v13, v14')
    a('v_lshl_add_u32 v13, v12, 3, v13')
    a('s_mul_i32 s34, s33, 800')
    a('s_add_u32 s34, s34, %d' % PHI)
    a('v_add_u32 v13, s34, v13')
    a('v_mov_b32 v14, %d' % ZERO)
    a('v_cndmask_b32 v152, v14, v13, s[36:37]')
    a('v_add_u32 v13, 32, v13')
    a('v_cmp_eq_u32 vcc, 0, v12')
    a('s_and_b64 s[36:37], s[36:37], vcc')
    a('v_cndmask_b32 v153, v14, v13, s[36:37]')
    a('s_waitcnt lgkmcnt(0)')
    stamp(a, 1)
    a('s_barrier')
    stamp(a, 2)
    for T in range(2):
        for s in range(3):
            for h in range(2):
                r0 = PA + (3*T+s)*4 + 2*h
                if s == 2 and h == 1:
                    a('v_mov_b32 v%d, 0' % r0); a('v_mov_b32 v%d, 0' % (r0+1))
                else:
                    a('ds_read_b64_tr_b16 %s, v%d offset:%d' % (vr(r0,2), 152+T, (8*s+4*h)*40))
    def reads(s, ks, b):
        slot = s % NSLOT
        for tt in range(2):
            a('ds_read_b128 %s, v%d offset:%d' % (vr(xfr(b,tt),4), AX+4*tt+ks, XR + slot*16384))
        for t in range(2):
            for h in range(2):
                a('ds_read_b64_tr_b16 %s, v%d offset:%d' % (vr(wfr(b,t)+2*h,2), AW+t, slot*16384 + ks*4096 + h*1024))
    reads(0, 0, 0)
    for s in range(10):
        for ks in range(4):
            b = (4*s+ks) & 1
            if ks < 3:
                reads(s, ks+1, b^1)
                a('s_waitcnt lgkmcnt(6)')
            else:
                a('s_waitcnt lgkmcnt(0)')
                a('s_barrier')
                if s < 9: reads(s+1, 0, b^1)
            first = (s == 0 and ks == 0)
            for tt in range(2):
                for t in range(2):
                    c = '0' if first else vr(accr(tt,t),16)
                    a('v_mfma_f32_32x32x16_bf16 %s, %s, %s, %s' % (vr(accr(tt,t),16), vr(wfr(b,t),4), vr(xfr(b,tt),4), c))
            for d in range(4):
                x = xfr(b,0)+d
                a('v_dot2c_f32_bf16 v%d, v%d, v%d' % (SQ, x, x))
                a('v_dot2c_f32_bf16 v%d, v%d, v%d' % (CS0, wfr(b,0)+d, ONES))
                a('v_dot2c_f32_bf16 v%d, v%d, v%d' % (SX, x, ONES))
                a('v_dot2c_f32_bf16 v%d, v%d, v%d' % (CS1, wfr(b,1)+d, ONES))
    stamp(a, 3)
    k1_epilogue(a, name)

def halfsum(a, r, tmp):
    a('v_mov_b32 v%d, v%d' % (tmp, r))
    a('v_permlane32_swap_b32 v%d, v%d' % (r, tmp))
    a('v_add_f32 v%d, v%d, v%d' % (r, r, tmp))

def k1_epilogue(a, name):
    for r in (SX, SQ, CS0, CS1): halfsum(a, r, 2)
    a('v_and_b32 v2, 31, v1')
    a('v_lshrrev_b32 v3, 5, v1')
    a('s_lshl_b32 s34, s32, 1')
    a('s_add_u32 s34, s34, s33')
    a('s_lshl_b32 s34, s34, 8')
    a('s_add_u32 s34, s34, %d' % ST)
    a('v_lshl_add_u32 v4, v2, 3, s34')
    a('ds_write_b64 v4, %s' % vr(SX,2))
    a('s_lshl_b32 s35, s3, 8')
    a('s_add_u32 s35, s35, %d' % CS)
    a('v_lshl_add_u32 v5, v2, 2, s35')
    a('ds_write_b32 v5, v%d' % CS0)
    a('ds_write_b32 v5, v%d offset:128' % CS1)
    a('s_waitcnt lgkmcnt(0)')
    a('s_barrier')
    a('v_xor_b32 v6, 256, v4')
    a('ds_read_b64 v[8:9], v6')
    a('v_lshl_add_u32 v5, v3, 4, s35')
    for t in range(2):
        for i in range(4):
            a('ds_read_b128 %s, v5 offset:%d' % (vr(CSD+16*t+4*i,4), t*128 + i*32))
    a('s_mov_b32 s36, 0x3acccccd')
    def mkstats(tt, sx, sq):
        a('v_mul_f32 v10, s36, v%d' % sx)
        a('v_mul_f32 v11, s36, v%d' % sq)
        a('v_fma_f32 v11, -v10, v10, v11')
        a('v_max_f32 v11, 0, v11')
        a('v_add_f32 v11, 0x3727c5ac, v11')
        a('v_rsq_f32 v%d, v11' % RSTD[tt])
        a('v_sub_f32 v%d, 0, v10' % NMEAN[tt])
    mkstats(0, SX, SQ)
    a('s_waitcnt lgkmcnt(8)')
    mkstats(1, 8, 9)
    a('s_waitcnt lgkmcnt(0)')
    for tt in range(2):
        for t in range(2):
            for p in range(8):
                r = accr(tt,t)+2*p
                a('v_pk_fma_f32 %s, %s, %s, %s op_sel_hi:[1,0,1]' % (vr(r,2), vr(CSD+16*t+2*p,2), vr(NMEAN[tt],2), vr(r,2)))
            for p in range(8):
                r = accr(tt,t)+2*p
                a('v_pk_mul_f32 %s, %s, %s op_sel_hi:[1,0]' % (vr(r,2), vr(r,2), vr(RSTD[tt],2)))
            for p in range(8):
                r = accr(tt,t)+2*p
                a('v_cvt_pk_bf16_f32 v%d, v%d, v%d' % (QB[tt]+8*t+p, r, r+1))
    for tt in range(2):
        for T in range(2):
            for s in range(3):
                c = '0' if s == 0 else vr(accr(tt,T),16)
                a('v_mfma_f32_32x32x16_bf16 %s, %s, %s, %s' % (vr(accr(tt,T),16), vr(PA+(3*T+s)*4,4), vr(QB[tt]+4*s,4), c))
    a('s_mul_i32 s34, s33, 24576')
    a('s_lshl_b32 s35, s32, 6')
    a('v_add_u32 v4, s35, v2')
    a('v_mul_u32_u24 v4, 192, v4')
    a('v_add_u32 v4, s34, v4')
    a('s_mul_i32 s35, s33, %d' % (32*192))
    a('v_add_u32 v5, s35, v4')
    a('s_sub_u32 s35, %d, s35' % (32*192))
    a('v_add_u32 v6, s35, v4')
    a('v_bfe_u32 v7, v2, 1, 3')
    a('s_mov_b32 s38, 0x%x' % LOG2E); a('s_mov_b32 s39, 0x%x' % LOG2E)
    for tt in range(2):
        softmax(a, tt)
        pk = PK[tt]
        for u in range(10):
            a('v_permlane32_swap_b32 v%d, v%d' % (pk+u, pk+10+u))
        rowb = 5+tt
        for u2 in range(5):
            a('v_mul_u32_u24 v8, 5, v3')
            a('v_add_u32 v8, %d, v8' % u2)
            a('v_xor_b32 v9, v8, v7')
            a('v_and_b32 v9, 7, v9')
            a('v_and_b32 v8, 8, v8')
            a('v_or_b32 v8, v8, v9')
            a('v_lshl_add_u32 v8, v8, 3, v%d' % rowb)
            a('ds_write_b64 v8, %s' % vr(pk+10+2*u2,2))
        a('v_cmp_eq_u32 vcc, 1, v3')
        a('v_mov_b32 v10, 0x3f80')
        a('v_mov_b32 v11, 0')
        a('v_cndmask_b32 v%d, v%d, v10, vcc' % (QB[tt]+14, QB[tt]+14))
        a('v_cndmask_b32 v%d, v%d, v11, vcc' % (QB[tt]+15, QB[tt]+15))
        for q in range(3):
            a('v_mul_u32_u24 v8, 3, v3')
            a('v_add_u32 v8, %d, v8' % q)
            a('v_xor_b32 v9, v8, v7')
            a('v_and_b32 v9, 7, v9')
            a('v_add_u32 v9, 16, v9')
            a('v_lshl_add_u32 v8, v9, 3, v%d' % rowb)
            a('ds_write_b64 v8, %s' % vr(QB[tt]+10+2*q,2))
    a('s_lshl_b32 s34, s4, 4')
    a('s_add_u32 s34, s34, s5')
    a('s_lshl_b32 s34, s34, 2')
    a('s_add_u32 s34, s34, s3')
    a('s_lshl_b32 s34, s34, 1')
    a('v_lshlrev_b32 v8, 4, v1')
    a('v_lshlrev_b32 v9, 3, v1')
    for tt in range(2):
        if tt == 0: a('s_add_u32 s35, s34, s33')
        else:
            a('s_xor_b32 s35, s33, 1'); a('s_add_u32 s35, s34, s35')
        a('s_mul_i32 s35, s35, 2560')
        a('s_add_u32 s35, s35, %d' % WS_PHIQ)
        pk = PK[tt]
        a('buffer_store_dwordx4 %s, v8, s[20:23], s35 offen' % vr(pk,4))
        a('buffer_store_dwordx4 %s, v8, s[20:23], s35 offen offset:1024' % vr(pk+4,4))
        a('buffer_store_dwordx2 %s, v9, s[20:23], s35 offen offset:2048' % vr(pk+8,2))
    a('s_waitcnt lgkmcnt(0)')
    a('s_barrier')
    stamp(a, 4)
    a('v_lshrrev_b32 v4, 4, v1')
    a('v_bfe_u32 v5, v1, 2, 2')
    a('v_and_b32 v6, 3, v1')
    a('v_lshrrev_b32 v8, 1, v4')
    a('v_lshlrev_b32 v9, 3, v8')
    a('v_add_u32 v9, v9, v5')
    a('v_and_b32 v10, 1, v4')
    a('v_lshl_add_u32 v10, v10, 2, v6')
    a('s_mul_i32 s34, s33, 24576')
    for h in range(2):
        a('v_add_u32 v11, %d, v9' % (4*h))
        a('v_bfe_u32 v12, v11, 1, 3')
        a('v_xor_b32 v12, v12, v10')
        a('v_mul_u32_u24 v11, 192, v11')
        a('v_lshl_add_u32 v11, v12, 3, v11')
        a('v_add_u32 v%d, s34, v11' % (12+h+1))
    a('s_lshl_b32 s35, s32, 6')
    a('v_add_u32 v15, s35, v13')
    a('v_add_u32 v2, s35, v14')
    KA, KB, KD = 160, 192, 16
    for ks in range(8):
        a('ds_read_b64_tr_b16 %s, v15 offset:%d' % (vr(KA+4*ks,2), ks*3072))
        a('ds_read_b64_tr_b16 %s, v2 offset:%d' % (vr(KA+4*ks+2,2), ks*3072))
        a('ds_read_b64_tr_b16 %s, v13 offset:%d' % (vr(KB+4*ks,2), ks*3072+128))
        a('ds_read_b64_tr_b16 %s, v14 offset:%d' % (vr(KB+4*ks+2,2), ks*3072+128))
        if ks >= 2:
            a('s_waitcnt lgkmcnt(8)')
            k = ks-2
            a('v_mfma_f32_32x32x16_bf16 %s, %s, %s, %s' % (vr(KD,16), vr(KA+4*k,4), vr(KB+4*k,4), '0' if k == 0 else vr(KD,16)))
    for k, w in ((6, 4), (7, 0)):
        a('s_waitcnt lgkmcnt(%d)' % w)
        a('v_mfma_f32_32x32x16_bf16 %s, %s, %s, %s' % (vr(KD,16), vr(KA+4*k,4), vr(KB+4*k,4), vr(KD,16)))
    a('v_and_b32 v2, 31, v1')
    a('v_lshrrev_b32 v3, 5, v1')
    a('v_mul_u32_u24 v4, 21, v3')
    a('v_add_u32 v4, v4, v2')
    a('v_lshlrev_b32 v4, 3, v4')
    a('s_lshl_b32 s34, s5, 4')
    a('s_add_u32 s34, s34, s4')
    a('s_mul_i32 s34, s34, 3360')
    a('s_mul_i32 s35, s33, 1680')
    a('s_add_u32 s34, s34, s35')
    a('s_mul_i32 s35, s32, %d' % (8*21*8))
    a('s_add_u32 s34, s34, s35')
    a('s_add_u32 s34, s34, %d' % WS_KVP)
    a('v_cmp_ge_u32 vcc, 20, v2')
    a('s_and_saveexec_b64 s[36:37], vcc')
    for ii in range(4):
        a('v_cvt_pk_bf16_f32 v%d, v%d, v%d' % (40+2*ii, KD+4*ii, KD+4*ii+1))
        a('v_cvt_pk_bf16_f32 v%d, v%d, v%d' % (41+2*ii, KD+4*ii+2, KD+4*ii+3))
    a('buffer_store_dwordx2 v[40:41], v4, s[20:23], s34 offen')
    a('s_cmp_eq_u32 s32, 0')
    a('s_cbranch_scc0 %s_kvdone' % name)
    for ii in range(1, 4):
        a('buffer_store_dwordx2 %s, v4, s[20:23], s34 offen offset:%d' % (vr(40+2*ii,2), ii*2*21*8))
    a.label(name + '_kvdone')
    a('s_mov_b64 exec, s[36:37]')

def softmax(a, tt):
    P0 = accr(tt,0); P1 = accr(tt,1)
    p = [P0+i for i in range(16)] + [P1+i for i in range(4)]
    for (op3, op2, base) in (('v_max3_f32', 'v_max_f32', 2), ('v_min3_f32', 'v_min_f32', 8)):
        pass
    def tree(op3, op2, t0, dst):
        for g in range(6):
            a('%s v%d, v%d, v%d, v%d' % (op3, t0+g, p[3*g], p[3*g+1], p[3*g+2]))
        a('%s v%d, v%d, v%d, v%d' % (op3, t0+6, p[18], p[19], t0))
        a('%s v%d, v%d, v%d, v%d' % (op3, t0+7, t0+1, t0+2, t0+3))
        a('%s v%d, v%d, v%d, v%d' % (op3, t0+8, t0+4, t0+5, t0+6))
        a('%s v%d, v%d, v%d' % (op2, dst, t0+7, t0+8))
    tree('v_max3_f32', 'v_max_f32', EX, 10)
    tree('v_min3_f32', 'v_min_f32', EX+10, 12)
    a('v_mul_f32 v10, 0x%x, v10' % (LOG2E | 0x80000000))
    a('v_mul_f32 v12, 0x%x, v12' % LOG2E)
    pp = [P0+2*i for i in range(8)] + [P1, P1+2]
    for k in range(10):
        a('v_pk_fma_f32 %s, %s, s[38:39], v[10:11] op_sel_hi:[1,1,0]' % (vr(EX+2*k,2), vr(pp[k],2)))
        a('v_pk_fma_f32 %s, %s, s[38:39], v[12:13] op_sel_hi:[1,1,0] neg_lo:[1,0,0] neg_hi:[1,0,0]' % (vr(EX+20+2*k,2), vr(pp[k],2)))
    for k in range(40):
        a('v_exp_f32 v%d, v%d' % (EX+k, EX+k))
    for half in range(2):
        e = EX + 20*half; t = P0 + 8*half
        a('v_pk_add_f32 %s, %s, %s' % (vr(t,2), vr(e,2), vr(e+2,2)))
        a('v_pk_add_f32 %s, %s, %s' % (vr(t+2,2), vr(e+4,2), vr(e+6,2)))
        a('v_pk_add_f32 %s, %s, %s' % (vr(t+4,2), vr(e+8,2), vr(e+10,2)))
        a('v_pk_add_f32 %s, %s, %s' % (vr(t+6,2), vr(e+12,2), vr(e+14,2)))
    for half in range(2):
        e = EX + 20*half; t = P0 + 8*half
        a('v_pk_add_f32 %s, %s, %s' % (vr(t,2), vr(t,2), vr(t+2,2)))
        a('v_pk_add_f32 %s, %s, %s' % (vr(t+4,2), vr(t+4,2), vr(t+6,2)))
        a('v_pk_add_f32 %s, %s, %s' % (vr(t+2,2), vr(e+16,2), vr(e+18,2)))
    for half in range(2):
        t = P0 + 8*half
        a('v_pk_add_f32 %s, %s, %s' % (vr(t,2), vr(t,2), vr(t+4,2)))
    for half in range(2):
        t = P0 + 8*half
        a('v_pk_add_f32 %s, %s, %s' % (vr(t,2), vr(t,2), vr(t+2,2)))
    for half in range(2):
        t = P0 + 8*half
        a('v_add_f32 v%d, v%d, v%d' % (t, t, t+1))
    a('v_rcp_f32 v10, v%d' % P0)
    a('v_rcp_f32 v12, v%d' % (P0+8))
    for k in range(10):
        a('v_pk_mul_f32 %s, %s, v[10:11] op_sel_hi:[1,0]' % (vr(EX+2*k,2), vr(EX+2*k,2)))
        a('v_pk_mul_f32 %s, %s, v[12:13] op_sel_hi:[1,0]' % (vr(EX+20+2*k,2), vr(EX+20+2*k,2)))
    for k in range(20):
        a('v_cvt_pk_bf16_f32 v%d, v%d, v%d' % (PK[tt]+k, EX+2*k, EX+2*k+1))
```

```python
from common import *
from k1 import halfsum
K2_LDS = 16384
KVT = 0; CT = 8192

def k2(a, name):
    entry(a, name)
    stamp(a, 0)
    a('s_load_dwordx4 s[24:27], s[0:1], %d' % KA_WG)
    a('s_load_dwordx2 s[30:31], s[0:1], %d' % KA_WS)
    a('v_lshrrev_b32 v2, 6, v0')
    a('v_and_b32 v1, 63, v0')
    a('v_readfirstlane_b32 s3, v2')
    wgmap(a, 4, 5)
    a('s_xor_b32 s6, s5, 1')
    a('s_waitcnt lgkmcnt(0)')
    srd(a, 20, 30, SZ_WS)
    p2_body(a, name, load_phiq=True)
    a.label(name + '_end')
    a('s_endpgm')

BQ = [100, 112]
def p2_body(a, name, load_phiq):
    a('s_lshl_b32 s34, s6, 4')
    a('s_mul_i32 s34, s34, 3360')
    a('s_add_u32 s34, s34, %d' % WS_KVP)
    a('v_lshlrev_b32 v4, 3, v0')
    a('v_cmp_gt_u32 vcc, 420, v0')
    a('s_and_saveexec_b64 s[36:37], vcc')
    a('s_cbranch_execz %s_nopart' % name)
    for ii in range(16):
        a('s_add_u32 s35, s34, %d' % (ii*3360))
        a('buffer_load_dwordx2 %s, v4, s[20:23], s35 offen' % vr(16+2*ii,2))
    a.label(name + '_nopart')
    a('s_mov_b64 exec, s[36:37]')
    a('s_cmp_ge_u32 s3, 4')
    a('s_cbranch_scc1 %s_cs1' % name)
    if load_phiq:
        a('s_lshl_b32 s34, s4, 4')
        a('s_add_u32 s34, s34, s5')
        a('s_lshl_b32 s34, s34, 2')
        a('s_add_u32 s34, s34, s3')
        a('s_mul_i32 s34, s34, 5120')
        a('s_add_u32 s34, s34, %d' % WS_PHIQ)
        a('v_lshlrev_b32 v8, 4, v1')
        a('v_lshlrev_b32 v9, 3, v1')
        for tt in range(2):
            a('s_add_u32 s35, s34, %d' % (tt*2560))
            a('buffer_load_dwordx4 %s, v8, s[20:23], s35 offen' % vr(BQ[tt],4))
            a('buffer_load_dwordx4 %s, v8, s[20:23], s35 offen offset:1024' % vr(BQ[tt]+4,4))
            a('buffer_load_dwordx2 %s, v9, s[20:23], s35 offen offset:2048' % vr(BQ[tt]+8,2))
            a('v_mov_b32 v%d, 0' % (BQ[tt]+10)); a('v_mov_b32 v%d, 0' % (BQ[tt]+11))
    a('s_branch %s_red' % name)
    a.label(name + '_cs1')
    a('s_cmp_ge_u32 s3, 6')
    a('s_cselect_b32 s8, s26, s24')
    a('s_cselect_b32 s9, s27, s25')
    a('s_mov_b32 s10, 0x%x' % SZ_WG)
    a('s_mov_b32 s11, 0x20000')
    a('v_and_b32 v5, 127, v0')
    a('v_mul_u32_u24 v6, 5462, v5')
    a('v_lshrrev_b32 v6, 16, v6')
    a('v_mul_u32_u24 v7, 12, v6')
    a('v_sub_u32 v7, v5, v7')
    a('v_mul_u32_u24 v8, %d, v6' % (4*3072))
    a('v_lshl_add_u32 v8, v7, 4, v8')
    a('s_mul_i32 s34, s4, %d' % (40*3072))
    a('s_mul_i32 s35, s5, 192')
    a('s_add_u32 s34, s34, s35')
    a('v_cmp_gt_u32 vcc, 120, v5')
    a('s_and_saveexec_b64 s[36:37], vcc')
    for r in range(4):
        a('s_add_u32 s35, s34, %d' % (r*3072))
        a('buffer_load_dwordx4 %s, v8, s[8:11], s35 offen' % vr(64+4*r,4))
    a('s_mov_b64 exec, s[36:37]')
    a.label(name + '_red')
    a('v_cmp_gt_u32 vcc, 420, v0')
    a('s_and_saveexec_b64 s[36:37], vcc')
    a('s_cbranch_execz %s_zpad' % name)
    a('v_cmp_le_u32 vcc, 210, v0')
    a('v_cndmask_b32 v5, 0, 1, vcc')
    a('v_mul_u32_u24 v6, 210, v5')
    a('v_sub_u32 v6, v0, v6')
    a('v_mul_u32_u24 v7, 3121, v6')
    a('v_lshrrev_b32 v7, 16, v7')
    a('v_mul_u32_u24 v8, 21, v7')
    a('v_sub_u32 v8, v6, v8')
    a('v_cmp_le_u32 vcc, 5, v7')
    a('v_cndmask_b32 v9, 0, 1, vcc')
    a('v_mul_u32_u24 v10, 5, v9')
    a('v_sub_u32 v10, v7, v10')
    a('v_mul_u32_u24 v11, 3072, v5')
    a('v_mul_u32_u24 v12, 48, v9')
    a('v_add_u32 v11, v11, v12')
    a('v_lshl_add_u32 v11, v10, 3, v11')
    a('v_cmp_eq_u32 vcc, 20, v8')
    a('v_mov_b32 v12, 24')
    a('v_cndmask_b32 v12, v8, v12, vcc')
    a('v_mul_u32_u24 v12, 96, v12')
    a('v_add_u32 v11, v11, v12')
    a('s_mov_b64 s[38:39], vcc')
    a('s_waitcnt vmcnt(6)')
    a('s_cmp_ge_u32 s3, 4')
    a('s_cbranch_scc0 %s_w1' % name)
    a('s_waitcnt vmcnt(4)')
    a.label(name + '_w1')
    acc = 48
    for ii in range(16):
        r = 16+2*ii
        if ii == 0:
            a('v_lshlrev_b32 v%d, 16, v%d' % (acc, r)); a('v_and_b32 v%d, 0xffff0000, v%d' % (acc+1, r))
            a('v_lshlrev_b32 v%d, 16, v%d' % (acc+2, r+1)); a('v_and_b32 v%d, 0xffff0000, v%d' % (acc+3, r+1))
        else:
            a('v_lshlrev_b32 v52, 16, v%d' % r); a('v_and_b32 v53, 0xffff0000, v%d' % r)
            a('v_lshlrev_b32 v54, 16, v%d' % (r+1)); a('v_and_b32 v55, 0xffff0000, v%d' % (r+1))
            a('v_pk_add_f32 v[48:49], v[48:49], v[52:53]')
            a('v_pk_add_f32 v[50:51], v[50:51], v[54:55]')
    a('v_cvt_pk_bf16_f32 v52, v48, v49')
    a('v_cvt_pk_bf16_f32 v53, v50, v51')
    a('ds_write_b64 v11, v[52:53] offset:%d' % KVT)
    a('s_and_b64 exec, exec, s[38:39]')
    a('s_cbranch_execz %s_zpad' % name)
    a('ds_write_b64 v11, v[52:53] offset:%d' % (KVT + 4*96))
    a.label(name + '_zpad')
    a('s_mov_b64 exec, s[36:37]')
    a('v_subrev_u32 v5, 420, v0')
    a('v_cmp_gt_u32 vcc, 88, v5')
    a('s_and_saveexec_b64 s[36:37], vcc')
    a('s_cbranch_execz %s_zp2' % name)
    a('v_cmp_le_u32 vcc, 44, v5')
    a('v_cndmask_b32 v6, 0, 1, vcc')
    a('v_mul_u32_u24 v7, 44, v6')
    a('v_sub_u32 v7, v5, v7')
    a('v_lshrrev_b32 v8, 1, v7')
    a('v_and_b32 v9, 1, v7')
    a('v_subrev_u32 v10, 20, v8')
    a('v_lshl_add_u32 v10, v10, 2, 24')
    a('v_cmp_gt_u32 vcc, 20, v8')
    a('v_cndmask_b32 v10, v10, v8, vcc')
    a('v_mul_u32_u24 v10, 96, v10')
    a('v_mul_u32_u24 v6, 3072, v6')
    a('v_mul_u32_u24 v9, 48, v9')
    a('v_add3_u32 v10, v10, v6, v9')
    a('v_mov_b32 v12, 0'); a('v_mov_b32 v13, 0')
    a('ds_write_b64 v10, v[12:13] offset:%d' % (KVT+40))
    a.label(name + '_zp2')
    a('s_mov_b64 exec, s[36:37]')
    a('s_cmp_ge_u32 s3, 4')
    a('s_cbranch_scc1 %s_cs2' % name)
    a('s_waitcnt vmcnt(0) lgkmcnt(0)')
    stamp(a, 1)
    a('s_barrier')
    stamp(a, 2)
    a('s_lshr_b32 s32, s3, 1')
    a('s_and_b32 s33, s3, 1')
    a('v_and_b32 v2, 31, v1')
    a('v_lshrrev_b32 v3, 5, v1')
    a('v_mul_u32_u24 v4, 96, v2')
    a('v_mul_u32_u24 v5, 48, v3')
    a('v_add_u32 v4, v4, v5')
    a('s_mul_i32 s34, s33, 3072')
    a('v_add_u32 v4, s34, v4')
    for s in range(3):
        a('ds_read_b128 %s, v4 offset:%d' % (vr(64+4*s,4), KVT + 16*s))
    a('s_waitcnt lgkmcnt(0)')
    OA = [16, 32]
    for tt in range(2):
        for s in range(3):
            a('v_mfma_f32_32x32x16_bf16 %s, %s, %s, %s' % (vr(OA[tt],16), vr(64+4*s,4), vr(BQ[tt]+4*s,4), '0' if s == 0 else vr(OA[tt],16)))
    a('v_lshrrev_b32 v5, 4, v2')
    a('v_and_b32 v6, 15, v2')
    a('v_mul_u32_u24 v7, %d, v5' % (20*1024))
    a('v_lshl_add_u32 v7, v6, 4, v7')
    a('v_lshl_add_u32 v8, v3, 8, v7')
    a('s_lshl_b32 s34, s4, 3')
    a('s_lshl_b32 s35, s32, 2')
    a('s_add_u32 s34, s34, s35')
    a('s_mul_i32 s34, s34, %d' % (20*1024))
    a('s_add_u32 s34, s34, %d' % WS_OF)
    a('s_lshl_b32 s35, s6, 10')
    a('s_add_u32 s40, s34, s35')
    a('s_lshl_b32 s35, s33, 9')
    a('s_add_u32 s40, s40, s35')
    a('s_lshr_b32 s35, s6, 2')
    a('s_add_u32 s35, s35, 16')
    a('s_lshl_b32 s35, s35, 10')
    a('s_add_u32 s41, s34, s35')
    a('s_and_b32 s35, s6, 3')
    a('s_lshl_b32 s35, s35, 8')
    a('s_add_u32 s41, s41, s35')
    a('s_lshl_b32 s35, s33, 3')
    a('s_add_u32 s41, s41, s35')
    for tt in range(2):
        o = OA[tt]
        a('v_add_f32 v10, 0x358637bd, v%d' % (o+12))
        a('v_rcp_f32 v10, v10')
        for p in range(6):
            a('v_pk_mul_f32 %s, %s, v[10:11] op_sel_hi:[1,0]' % (vr(o+2*p,2), vr(o+2*p,2)))
        for p in range(6):
            a('v_cvt_pk_bf16_f32 v%d, v%d, v%d' % (48+8*tt+p, o+2*p, o+2*p+1))
        a('s_add_u32 s35, s40, %d' % (tt*2*20*1024))
        a('buffer_store_dwordx4 %s, v8, s[20:23], s35 offen' % vr(48+8*tt,4))
        a('s_add_u32 s35, s41, %d' % (tt*2*20*1024))
        a('s_mov_b32 exec_hi, 0')
        a('buffer_store_dwordx2 %s, v7, s[20:23], s35 offen' % vr(52+8*tt,2))
        a('s_mov_b64 exec, -1')
    stamp(a, 3)
    prof_flush(a, 1, 4, 0, name+'c')
    a('s_branch %s_end' % name)
    a.label(name + '_cs2')
    a('s_waitcnt vmcnt(0)')
    a('v_and_b32 v5, 127, v0')
    a('v_cmp_gt_u32 vcc, 120, v5')
    a('s_and_saveexec_b64 s[36:37], vcc')
    for e in range(4):
        for r in range(4):
            src = 64+4*r+e
            if r == 0:
                a('v_lshlrev_b32 v%d, 16, v%d' % (80+2*e, src)); a('v_and_b32 v%d, 0xffff0000, v%d' % (81+2*e, src))
            else:
                a('v_lshlrev_b32 v90, 16, v%d' % src); a('v_and_b32 v91, 0xffff0000, v%d' % src)
                a('v_pk_add_f32 %s, %s, v[90:91]' % (vr(80+2*e,2), vr(80+2*e,2)))
    a('s_cmp_ge_u32 s3, 6')
    a('s_cselect_b32 s34, 3840, 0')
    a('v_mul_u32_u24 v6, 5462, v5')
    a('v_lshrrev_b32 v6, 16, v6')
    a('v_mul_u32_u24 v7, 12, v6')
    a('v_sub_u32 v7, v5, v7')
    a('v_mul_u32_u24 v6, 384, v6')
    a('v_lshl_add_u32 v6, v7, 5, v6')
    a('v_add_u32 v6, s34, v6')
    a('ds_write_b128 v6, v[80:83] offset:%d' % CT)
    a('ds_write_b128 v6, v[84:87] offset:%d' % (CT+16))
    a('s_mov_b64 exec, s[36:37]')
    a('s_waitcnt lgkmcnt(0)')
    a('s_barrier')
    a('v_subrev_u32 v5, 256, v0')
    a('v_cmp_gt_u32 vcc, 192, v5')
    a('s_and_saveexec_b64 s[36:37], vcc')
    a('s_cbranch_execz %s_end' % name)
    a('v_cmp_le_u32 vcc, 96, v5')
    a('v_cndmask_b32 v6, 0, 1, vcc')
    a('v_mul_u32_u24 v6, %d, v6' % (3840-96*4))
    a('v_lshl_add_u32 v6, v5, 2, v6')
    for rg in range(10):
        a('ds_read_b32 v%d, v6 offset:%d' % (16+rg, CT + rg*384))
    a('s_waitcnt lgkmcnt(0)')
    for rg in range(1, 10):
        a('v_add_f32 v16, v16, v%d' % (16+rg))
    a('s_lshl_b32 s34, s5, 4')
    a('s_add_u32 s34, s34, s4')
    a('s_mul_i32 s34, s34, 768')
    a('s_add_u32 s34, s34, %d' % WS_CSP)
    a('v_lshlrev_b32 v6, 2, v5')
    a('buffer_store_dword v16, v6, s[20:23], s34 offen')
```

```python
from common import *
from k1 import halfsum
WOB = 0; XT = 102400
K3_LDS = 112640

def pat10(a, base, tmp):
    for p in range(5):
        a('v_add_u32 v%d, %d, v1' % (tmp, 64*p))
        a('v_mul_u32_u24 v%d, 6554, v%d' % (tmp+1, tmp))
        a('v_lshrrev_b32 v%d, 16, v%d' % (tmp+1, tmp+1))
        a('v_mul_u32_u24 v%d, 10, v%d' % (tmp+2, tmp+1))
        a('v_sub_u32 v%d, v%d, v%d' % (tmp+2, tmp, tmp+2))
        a('v_mul_u32_u24 v%d, 1280, v%d' % (tmp+1, tmp+1))
        a('v_lshl_add_u32 v%d, v%d, 4, v%d' % (base+p, tmp+2, tmp+1))

def rowsum4(a, r, tmp):
    halfsum(a, r, tmp)
    a('v_mov_b32 v%d, v%d' % (tmp, r))
    a('v_permlane16_swap_b32 v%d, v%d' % (r, tmp))
    a('v_add_f32 v%d, v%d, v%d' % (r, r, tmp))

def k3(a, name):
    entry(a, name)
    stamp(a, 0)
    a('s_load_dwordx2 s[24:25], s[0:1], %d' % KA_X)
    a('s_load_dwordx2 s[26:27], s[0:1], %d' % KA_WO)
    a('s_load_dwordx2 s[30:31], s[0:1], %d' % KA_WS)
    a('v_lshrrev_b32 v2, 6, v0')
    a('v_and_b32 v1, 63, v0')
    a('v_readfirstlane_b32 s3, v2')
    wgmap(a, 4, 5)
    a('s_and_b32 s6, s5, 1')
    a('s_lshr_b32 s7, s5, 1')
    a('s_waitcnt lgkmcnt(0)')
    srd(a, 8, 24, SZ_X); srd(a, 12, 26, SZ_WO); srd(a, 20, 30, SZ_WS)
    a('s_cmp_ge_u32 s3, 4')
    a('s_cbranch_scc1 %s_loader' % name)
    p3_consumer(a, name)
    stamp(a, 4)
    prof_flush(a, 2, 5, 0, name+'c')
    a('s_branch %s_end' % name)
    a.label(name + '_loader')
    a('s_sub_u32 s32, s3, 4')
    pat10(a, 10, 2)
    a('s_mul_i32 s34, s7, 160')
    a('s_mul_i32 s35, s32, %d' % (32*1280))
    a('s_add_u32 s35, s35, s34')
    a('s_mul_i32 s38, s32, 5120')
    for M in range(5):
        for p in range(5):
            a('s_add_u32 s42, s35, %d' % (M*128*1280))
            a('s_add_u32 m0, s38, %d' % (WOB + M*20480 + p*1024))
            a('buffer_load_dwordx4 v%d, s[12:15], s42 offen lds' % (10+p))
    a('s_cmp_ge_u32 s32, 2')
    a('s_cbranch_scc1 %s_nox' % name)
    a('s_lshl_b32 s36, s4, 7')
    a('s_lshl_b32 s37, s6, 6')
    a('s_add_u32 s36, s36, s37')
    a('s_lshl_b32 s37, s32, 5')
    a('s_add_u32 s36, s36, s37')
    a('s_mul_i32 s36, s36, 1280')
    a('s_add_u32 s36, s36, s34')
    for p in range(5):
        a('s_add_u32 m0, s38, %d' % (XT + p*1024))
        a('buffer_load_dwordx4 v%d, s[8:11], s36 offen lds' % (10+p))
    a.label(name + '_nox')
    a('s_waitcnt vmcnt(0)')
    a('s_barrier')
    a.label(name + '_end')
    a('s_endpgm')

OFR = 100
ACC3 = 16
AR = 40
def p3_addr(a):
    a('v_lshrrev_b32 v4, 4, v1')
    a('v_bfe_u32 v5, v1, 2, 2')
    a('v_and_b32 v6, 3, v1')
    a('v_lshrrev_b32 v7, 1, v4')
    a('v_mul_u32_u24 v7, 20, v7')
    a('v_and_b32 v8, 1, v4')
    a('v_lshl_add_u32 v7, v8, 2, v7')
    a('v_add_u32 v7, v7, v5')
    a('v_mul_u32_u24 v7, 160, v7')
    a('v_lshl_add_u32 v72, v6, 3, v7')
    a('v_add_u32 v73, 51200, v72')
    a('v_mul_u32_u24 v7, 40, v4')
    a('v_add_u32 v7, v7, v5')
    a('v_add_u32 v7, 16, v7')
    a('v_mul_u32_u24 v7, 160, v7')
    a('v_lshl_add_u32 v74, v6, 3, v7')
    a('v_add_u32 v75, 51200, v74')

def p3_reads(a, n):
    k, t5 = divmod(n, 5)
    buf = AR + 4*(n % 8)
    for h in range(2):
        if k < 16:
            reg = 72 if k < 8 else 73
            off = (40*(k % 8) + 8*h)*160 + 32*t5
        else:
            kk = k-16
            reg = 74 if kk < 2 else 75
            off = (160*(kk % 2) + 20*h)*160 + 32*t5
        a('ds_read_b64_tr_b16 %s, v%d offset:%d' % (vr(buf+2*h,2), reg, WOB + off))

def p3_consumer(a, name):
    a('s_lshl_b32 s34, s4, 3')
    a('s_lshl_b32 s35, s6, 2')
    a('s_add_u32 s34, s34, s35')
    a('s_add_u32 s34, s34, s3')
    a('s_mul_i32 s34, s34, %d' % (20*1024))
    a('s_add_u32 s34, s34, %d' % WS_OF)
    a('v_lshlrev_b32 v8, 4, v1')
    for k in range(20):
        a('s_add_u32 s35, s34, %d' % (k*1024))
        a('buffer_load_dwordx4 %s, v8, s[20:23], s35 offen' % vr(OFR+4*k,4))
    p3_addr(a)
    stamp(a, 1)
    a('s_barrier')
    stamp(a, 2)
    D = 7
    for n in range(D): p3_reads(a, n)
    for n in range(100):
        k, t5 = divmod(n, 5)
        if t5 == 0: a('s_waitcnt vmcnt(%d)' % (19-k))
        rem = min(D-1, 99-n)
        a('s_waitcnt lgkmcnt(%d)' % (2*rem))
        buf = AR + 4*(n % 8)
        a('v_mfma_f32_16x16x32_bf16 %s, %s, %s, %s' % (vr(ACC3+4*t5,4), vr(buf,4), vr(OFR+4*k,4), '0' if k == 0 else vr(ACC3+4*t5,4)))
        if n+D < 100: p3_reads(a, n+D)
    stamp(a, 3)
    p3_epilogue(a, name)

def p3_epilogue(a, name):
    a('v_and_b32 v2, 15, v1')
    a('v_lshrrev_b32 v4, 4, v1')
    a('s_lshl_b32 s34, s3, 4')
    a('v_add_u32 v5, s34, v2')
    a('v_mul_u32_u24 v5, 160, v5')
    a('v_lshl_add_u32 v5, v4, 3, v5')
    a('v_add_u32 v5, %d, v5' % XT)
    for t5 in range(5):
        a('ds_read_b64 %s, v5 offset:%d' % (vr(76+2*t5,2), 32*t5))
    a('s_waitcnt lgkmcnt(0)')
    for t5 in range(5):
        for e in range(2):
            src = 76+2*t5+e
            a('v_lshlrev_b32 v10, 16, v%d' % src); a('v_and_b32 v11, 0xffff0000, v%d' % src)
            a('v_pk_add_f32 %s, %s, v[10:11]' % (vr(ACC3+4*t5+2*e,2), vr(ACC3+4*t5+2*e,2)))
    for t5 in range(5):
        for e in range(2):
            a('v_cvt_pk_bf16_f32 v%d, v%d, v%d' % (86+2*t5+e, ACC3+4*t5+2*e, ACC3+4*t5+2*e+1))
    a('v_pk_add_f32 v[10:11], %s, %s' % (vr(ACC3,2), vr(ACC3+2,2)))
    a('v_pk_mul_f32 v[12:13], %s, %s' % (vr(ACC3,2), vr(ACC3,2)))
    a('v_pk_fma_f32 v[12:13], %s, %s, v[12:13]' % (vr(ACC3+2,2), vr(ACC3+2,2)))
    for p in range(2, 10):
        a('v_pk_add_f32 v[10:11], v[10:11], %s' % vr(ACC3+2*p,2))
        a('v_pk_fma_f32 v[12:13], %s, %s, v[12:13]' % (vr(ACC3+2*p,2), vr(ACC3+2*p,2)))
    a('v_add_f32 v10, v10, v11')
    a('v_add_f32 v11, v12, v13')
    rowsum4(a, 10, 12)
    rowsum4(a, 11, 12)
    a('s_lshl_b32 s34, s4, 2')
    a('s_lshl_b32 s35, s6, 1')
    a('s_add_u32 s34, s34, s35')
    a('s_lshr_b32 s35, s3, 1')
    a('s_add_u32 s34, s34, s35')
    a('s_mul_i32 s34, s34, 40')
    a('s_mul_i32 s35, s7, 5')
    a('s_add_u32 s34, s34, s35')
    a('s_lshl_b32 s34, s34, 10')
    a('s_add_u32 s34, s34, %d' % WS_HF)
    a('s_and_b32 s35, s3, 1')
    a('s_lshl_b32 s35, s35, 8')
    a('s_add_u32 s34, s34, s35')
    a('v_lshrrev_b32 v6, 1, v4')
    a('v_lshlrev_b32 v6, 9, v6')
    a('v_lshl_add_u32 v6, v2, 4, v6')
    a('v_and_b32 v7, 1, v4')
    a('v_lshl_add_u32 v6, v7, 3, v6')
    for t5 in range(5):
        a('s_add_u32 s35, s34, %d' % (t5*1024))
        a('buffer_store_dwordx2 %s, v6, s[20:23], s35 offen' % vr(86+2*t5,2))
    a('s_lshl_b32 s34, s4, 3')
    a('s_add_u32 s34, s34, s7')
    a('s_lshl_b32 s34, s34, 7')
    a('s_lshl_b32 s35, s6, 6')
    a('s_add_u32 s34, s34, s35')
    a('s_lshl_b32 s35, s3, 4')
    a('s_add_u32 s34, s34, s35')
    a('s_lshl_b32 s34, s34, 3')
    a('s_add_u32 s34, s34, %d' % WS_STAT)
    a('v_lshlrev_b32 v6, 3, v2')
    a('s_mov_b64 exec, 0xffff')
    a('buffer_store_dwordx2 v[10:11], v6, s[20:23], s34 offen')
    a('s_mov_b64 exec, -1')
```

```python
from common import *
XR4 = 0
WR4 = 49152
WSL = 24832
ST4 = WR4 + 3*WSL
CP4 = ST4 + 8192
CF4 = CP4 + 12288
K4_LDS = CF4 + 768
NS4 = 3

def k4(a, name):
    entry(a, name)
    stamp(a, 0)
    a('s_load_dwordx4 s[24:27], s[0:1], %d' % KA_WG)
    a('s_load_dwordx2 s[30:31], s[0:1], %d' % KA_WS)
    a('v_lshrrev_b32 v2, 6, v0')
    a('v_and_b32 v1, 63, v0')
    a('v_readfirstlane_b32 s3, v2')
    wgmap(a, 4, 5)
    a('s_waitcnt lgkmcnt(0)')
    srd(a, 20, 30, SZ_WS)
    a('s_cmp_ge_u32 s3, 4')
    a('s_cbranch_scc1 %s_loader' % name)
    p4_consumer(a, name)
    stamp(a, 4)
    prof_flush(a, 3, 5, 0, name+'c')
    a('s_branch %s_end' % name)
    a.label(name + '_loader')
    p4_loader(a, name)
    a.label(name + '_end')
    a('s_endpgm')

def p4_loader(a, name):
    a('s_sub_u32 s32, s3, 4')
    a('s_cmp_ge_u32 s32, 2')
    a('s_cselect_b32 s12, s26, s24')
    a('s_cselect_b32 s13, s27, s25')
    a('s_mov_b32 s14, 0x%x' % SZ_WG)
    a('s_mov_b32 s15, 0x20000')
    for p in range(3):
        a('v_add_u32 v2, %d, v1' % (64*p))
        a('v_mul_u32_u24 v3, 5462, v2')
        a('v_lshrrev_b32 v3, 16, v3')
        a('v_mul_u32_u24 v4, 12, v3')
        a('v_sub_u32 v4, v2, v4')
        a('v_mul_u32_u24 v3, 3072, v3')
        a('v_lshl_add_u32 v%d, v4, 4, v3' % (10+p))
    a('v_lshlrev_b32 v13, 4, v1')
    a('s_and_b32 s33, s32, 1')
    a('s_mul_i32 s36, s33, %d' % (32*3072))
    a('s_mul_i32 s37, s5, 192')
    a('s_add_u32 s36, s36, s37')
    a('s_lshr_b32 s37, s32, 1')
    a('s_mul_i32 s37, s37, 12320')
    a('s_mul_i32 s38, s33, 6144')
    a('s_add_u32 s37, s37, s38')
    a('s_lshl_b32 s38, s4, 2')
    a('s_add_u32 s38, s38, s32')
    a('s_mul_i32 s38, s38, 40960')
    a('s_add_u32 s38, s38, %d' % WS_HF)
    a('s_lshl_b32 s39, s32, 12')
    a('s_lshl_b32 s40, s4, 13')
    a('s_lshl_b32 s41, s32, 11')
    a('s_add_u32 s40, s40, s41')
    a('s_add_u32 s40, s40, %d' % WS_STAT)
    for p in range(2):
        a('s_add_u32 s42, s40, %d' % (p*1024))
        a('s_add_u32 m0, s41, %d' % (ST4 + p*1024))
        a('buffer_load_dwordx4 v13, s[20:23], s42 offen lds')
    a('s_mul_i32 s40, s5, 12288')
    a('s_mul_i32 s41, s32, 3072')
    a('s_add_u32 s40, s40, s41')
    a('s_add_u32 s40, s40, %d' % WS_CSP)
    for p in range(3):
        a('s_add_u32 s42, s40, %d' % (p*1024))
        a('s_add_u32 m0, s41, %d' % (CP4 + p*1024))
        a('buffer_load_dwordx4 v13, s[20:23], s42 offen lds')
    def issue(st):
        slot = st % NS4
        for ks in range(4):
            a('s_add_u32 s42, s38, %d' % ((4*st+ks)*1024))
            a('s_add_u32 m0, s39, %d' % (XR4 + slot*16384 + ks*1024))
            a('buffer_load_dwordx4 v13, s[20:23], s42 offen lds')
        for p in range(6):
            a('s_add_u32 s42, s36, %d' % ((st*64 + 16*(p//3))*3072))
            a('s_add_u32 m0, s37, %d' % (WR4 + slot*WSL + p*1024))
            a('buffer_load_dwordx4 v%d, s[12:15], s42 offen lds' % (10 + p % 3))
    for st in range(NS4): issue(st)
    a('s_waitcnt vmcnt(%d)' % (10*(NS4-1)))
    a('s_barrier')
    a('v_subrev_u32 v5, 256, v0')
    a('v_cmp_gt_u32 vcc, 192, v5')
    a('s_and_saveexec_b64 s[44:45], vcc')
    a('s_cbranch_execz %s_nocs' % name)
    a('v_lshlrev_b32 v6, 2, v5')
    a('v_add_u32 v6, %d, v6' % CP4)
    for ii in range(16):
        a('ds_read_b32 v%d, v6 offset:%d' % (16+ii, ii*768))
        if ii == 11: a('s_waitcnt lgkmcnt(4)')
    a('s_waitcnt lgkmcnt(0)')
    for ii in range(1, 16):
        a('v_add_f32 v16, v16, v%d' % (16+ii))
    a('ds_write_b32 v6, v16 offset:%d' % (CF4-CP4))
    a('s_waitcnt lgkmcnt(0)')
    a.label(name + '_nocs')
    a('s_mov_b64 exec, s[44:45]')
    for s in range(10):
        if s+1 <= 9:
            later = min(s+NS4-1, 9) - (s+1)
            a('s_waitcnt vmcnt(%d)' % (10*later))
        a('s_barrier')
        if s+NS4 <= 9: issue(s+NS4)

ACC4 = 16
FR4 = 112
AX4 = 152; AW4 = 153
def acc4(tt, t): return ACC4 + (3*tt+t)*16
def xf4(b, tt): return FR4 + 20*b + 4*tt
def wf4(b, t): return FR4 + 20*b + 8 + 4*t

def p4_consumer(a, name):
    a('s_lshr_b32 s32, s3, 1')
    a('s_and_b32 s33, s3, 1')
    a('s_lshl_b32 s34, s32, 13')
    a('v_lshl_add_u32 v%d, v1, 4, s34' % AX4)
    a('v_lshrrev_b32 v4, 4, v1')
    a('v_bfe_u32 v5, v1, 2, 2')
    a('v_and_b32 v6, 3, v1')
    a('v_lshrrev_b32 v7, 1, v4')
    a('v_lshl_add_u32 v7, v7, 3, v5')
    a('v_mul_u32_u24 v7, 192, v7')
    a('v_lshl_add_u32 v7, v6, 3, v7')
    a('s_mul_i32 s34, s33, 96')
    a('s_add_u32 s34, s34, %d' % WR4)
    a('v_add_u32 v7, s34, v7')
    a('v_and_b32 v8, 1, v4')
    a('v_lshl_add_u32 v%d, v8, 5, v7' % AW4)
    a('v_add_u32 v%d, 12320, v%d' % (AW4+1, AW4))
    a('v_mul_u32_u24 v8, 12320, v8')
    a('v_add_u32 v8, v8, v7')
    a('v_add_u32 v%d, 64, v8' % (AW4+2))
    stamp(a, 1)
    a('s_barrier')
    stamp(a, 2)
    def reads(s, ks, b):
        slot = s % NS4
        for tt in range(2):
            a('ds_read_b128 %s, v%d offset:%d' % (vr(xf4(b,tt),4), AX4, XR4 + slot*16384 + tt*4096 + ks*1024))
        for t in range(3):
            for h in range(2):
                a('ds_read_b64_tr_b16 %s, v%d offset:%d' % (vr(wf4(b,t)+2*h,2), AW4+t, slot*WSL + ks*3072 + h*768))
    reads(0, 0, 0)
    for s in range(10):
        for ks in range(4):
            b = (4*s+ks) & 1
            if ks < 3:
                a('s_waitcnt lgkmcnt(0)')
                reads(s, ks+1, b^1)
            else:
                a('s_waitcnt lgkmcnt(0)')
                a('s_barrier')
                if s < 9: reads(s+1, 0, b^1)
            first = (s == 0 and ks == 0)
            for tt in range(2):
                for t in range(3):
                    c = '0' if first else vr(acc4(tt,t),16)
                    a('v_mfma_f32_32x32x16_bf16 %s, %s, %s, %s' % (vr(acc4(tt,t),16), vr(wf4(b,t),4), vr(xf4(b,tt),4), c))
    stamp(a, 3)
    p4_epilogue(a, name)

def p4_epilogue(a, name):
    a('v_and_b32 v2, 31, v1')
    a('v_lshrrev_b32 v3, 5, v1')
    a('s_lshl_b32 s34, s32, 9')
    a('s_add_u32 s34, s34, %d' % ST4)
    a('v_lshl_add_u32 v4, v2, 3, s34')
    SB = 112
    for tt in range(2):
        for c in range(8):
            a('ds_read_b64 %s, v4 offset:%d' % (vr(SB+16*tt+2*c,2), c*1024 + tt*256))
        a('s_waitcnt lgkmcnt(0)')
    a('s_mul_i32 s34, s33, 192')
    a('s_add_u32 s34, s34, %d' % CF4)
    a('v_lshl_add_u32 v5, v3, 4, s34')
    CG, CU = 160, 184
    for q in range(6):
        a('ds_read_b128 %s, v5 offset:%d' % (vr(CG+4*q,4), q*32))
        a('ds_read_b128 %s, v5 offset:%d' % (vr(CU+4*q,4), 384 + q*32))
    a('s_mov_b32 s36, 0x3acccccd')
    NM = [6, 8]; R2 = [10, 12]
    for tt in range(2):
        b = SB+16*tt
        for c in range(1, 8):
            a('v_pk_add_f32 %s, %s, %s' % (vr(b,2), vr(b,2), vr(b+2*c,2)))
        a('v_mul_f32 v14, s36, v%d' % b)
        a('v_mul_f32 v15, s36, v%d' % (b+1))
        a('v_fma_f32 v15, -v14, v14, v15')
        a('v_max_f32 v15, 0, v15')
        a('v_add_f32 v15, 0x3727c5ac, v15')
        a('v_rcp_f32 v%d, v15' % R2[tt])
        a('v_sub_f32 v%d, 0, v14' % NM[tt])
    a('s_waitcnt lgkmcnt(0)')
    a('v_lshrrev_b32 v4, 4, v2')
    a('v_mul_u32_u24 v4, %d, v4' % (48*1024))
    a('v_and_b32 v5, 15, v2')
    a('v_lshl_add_u32 v4, v5, 4, v4')
    a('v_lshl_add_u32 v4, v3, 8, v4')
    a('s_lshl_b32 s34, s4, 3')
    a('s_lshl_b32 s35, s32, 2')
    a('s_add_u32 s34, s34, s35')
    a('s_mul_i32 s34, s34, 48')
    a('s_mul_i32 s35, s5, 3')
    a('s_add_u32 s34, s34, s35')
    a('s_lshl_b32 s34, s34, 10')
    a('s_mul_i32 s35, s33, %d' % (6*256))
    a('s_add_u32 s34, s34, s35')
    a('s_add_u32 s34, s34, %d' % WS_HID)
    HP = 208
    for tt in range(2):
        for q in range(6):
            if q < 4: g = acc4(tt,0)+4*q; u = acc4(tt,1)+4*q
            else: g = acc4(tt,2)+4*(q-4); u = acc4(tt,2)+8+4*(q-4)
            for e in range(2):
                a('v_pk_fma_f32 %s, %s, %s, %s op_sel_hi:[1,0,1]' % (vr(g+2*e,2), vr(CG+4*q+2*e,2), vr(NM[tt],2), vr(g+2*e,2)))
                a('v_pk_fma_f32 %s, %s, %s, %s op_sel_hi:[1,0,1]' % (vr(u+2*e,2), vr(CU+4*q+2*e,2), vr(NM[tt],2), vr(u+2*e,2)))
            for e in range(4):
                a('v_max_f32 v%d, 0, v%d' % (g+e, g+e))
            for e in range(2):
                a('v_pk_mul_f32 %s, %s, %s op_sel_hi:[1,0]' % (vr(u+2*e,2), vr(u+2*e,2), vr(R2[tt],2)))
            for e in range(2):
                a('v_pk_mul_f32 %s, %s, %s' % (vr(g+2*e,2), vr(g+2*e,2), vr(u+2*e,2)))
            for e in range(2):
                a('v_cvt_pk_bf16_f32 v%d, v%d, v%d' % (HP+12*tt+2*q+e, g+2*e, g+2*e+1))
        for c3 in range(3):
            a('s_add_u32 s35, s34, %d' % (tt*2*48*1024 + c3*512))
            a('buffer_store_dwordx4 %s, v4, s[20:23], s35 offen' % vr(HP+12*tt+4*c3,4))
```

```python
from common import *
from k3 import pat10
WR5 = 0; SL5 = 20480; NS5 = 6
OT5 = NS5*SL5
K5_LDS = OT5 + 10240

def k5(a, name):
    entry(a, name)
    stamp(a, 0)
    a('s_load_dwordx4 s[24:27], s[0:1], %d' % KA_WD)
    a('s_load_dwordx2 s[30:31], s[0:1], %d' % KA_WS)
    a('v_lshrrev_b32 v2, 6, v0')
    a('v_and_b32 v1, 63, v0')
    a('v_readfirstlane_b32 s3, v2')
    wgmap(a, 4, 5)
    a('s_and_b32 s6, s5, 1')
    a('s_lshr_b32 s7, s5, 1')
    a('s_waitcnt lgkmcnt(0)')
    srd(a, 12, 24, SZ_WD); srd(a, 16, 26, SZ_OUT); srd(a, 20, 30, SZ_WS)
    a('s_cmp_ge_u32 s3, 4')
    a('s_cbranch_scc1 %s_loader' % name)
    p5_consumer(a, name)
    stamp(a, 4)
    prof_flush(a, 4, 5, 0, name+'c')
    a('s_branch %s_fin' % name)
    a.label(name + '_loader')
    p5_loader(a, name)
    a.label(name + '_fin')
    p5_final(a, name)
    a.label(name + '_end')
    a('s_endpgm')

def p5_loader(a, name):
    a('s_sub_u32 s32, s3, 4')
    pat10(a, 10, 2)
    a('s_mul_i32 s34, s7, 160')
    a('s_mul_i32 s35, s32, %d' % (32*1280))
    a('s_add_u32 s35, s35, s34')
    a('s_mul_i32 s38, s32, 5120')
    def issue(st):
        slot = st % NS5
        for p in range(5):
            a('s_add_u32 s42, s35, %d' % (st*128*1280))
            a('s_add_u32 m0, s38, %d' % (WR5 + slot*SL5 + p*1024))
            a('buffer_load_dwordx4 v%d, s[12:15], s42 offen lds' % (10+p))
    for st in range(NS5): issue(st)
    a('s_waitcnt vmcnt(%d)' % (5*(NS5-1)))
    a('s_barrier')
    for s in range(12):
        if s+1 <= 11:
            later = min(s+NS5-1, 11) - (s+1)
            a('s_waitcnt vmcnt(%d)' % (5*later))
        a('s_barrier')
        if s+NS5 <= 11: issue(s+NS5)

XB = 100
NB5 = 16
ACC5 = 16; AR5 = 40; HR = 76
def p5_consumer(a, name):
    a('s_lshl_b32 s34, s4, 3')
    a('s_lshl_b32 s35, s6, 2')
    a('s_add_u32 s34, s34, s35')
    a('s_add_u32 s34, s34, s3')
    a('s_mul_i32 s34, s34, %d' % (48*1024))
    a('s_add_u32 s40, s34, %d' % WS_HID)
    a('v_lshlrev_b32 v8, 4, v1')
    a('v_and_b32 v2, 15, v1')
    a('v_lshrrev_b32 v4, 4, v1')
    a('s_lshl_b32 s34, s4, 2')
    a('s_lshl_b32 s35, s6, 1')
    a('s_add_u32 s34, s34, s35')
    a('s_lshr_b32 s35, s3, 1')
    a('s_add_u32 s34, s34, s35')
    a('s_mul_i32 s34, s34, 40')
    a('s_mul_i32 s35, s7, 5')
    a('s_add_u32 s34, s34, s35')
    a('s_lshl_b32 s34, s34, 10')
    a('s_add_u32 s34, s34, %d' % WS_HF)
    a('s_and_b32 s35, s3, 1')
    a('s_lshl_b32 s35, s35, 8')
    a('s_add_u32 s34, s34, s35')
    a('v_lshrrev_b32 v6, 1, v4')
    a('v_lshlrev_b32 v6, 9, v6')
    a('v_lshl_add_u32 v6, v2, 4, v6')
    a('v_and_b32 v7, 1, v4')
    a('v_lshl_add_u32 v6, v7, 3, v6')
    for t5 in range(5):
        a('s_add_u32 s35, s34, %d' % (t5*1024))
        a('buffer_load_dwordx2 %s, v6, s[20:23], s35 offen' % vr(HR+2*t5,2))
    def bload(k):
        a('s_add_u32 s35, s40, %d' % (k*1024))
        a('buffer_load_dwordx4 %s, v8, s[20:23], s35 offen' % vr(XB+4*(k % NB5),4))
    PD = NB5-1
    for k in range(PD): bload(k)
    a('v_bfe_u32 v5, v1, 2, 2')
    a('v_and_b32 v9, 3, v1')
    a('v_lshrrev_b32 v7, 1, v4')
    a('v_lshlrev_b32 v7, 4, v7')
    a('v_and_b32 v10, 1, v4')
    a('v_lshl_add_u32 v7, v10, 2, v7')
    a('v_add_u32 v7, v7, v5')
    a('v_mul_u32_u24 v7, 160, v7')
    a('v_lshl_add_u32 v72, v9, 3, v7')
    a('v_add_u32 v73, %d, v72' % (3*SL5))
    stamp(a, 1)
    a('s_barrier')
    stamp(a, 2)
    def reads(n):
        k, t5 = divmod(n, 5)
        st, kk = divmod(k, 4)
        slot = st % NS5
        reg = 72 if slot < 3 else 73
        buf = AR5 + 4*(n % 8)
        for h in range(2):
            a('ds_read_b64_tr_b16 %s, v%d offset:%d' % (vr(buf+2*h,2), reg, WR5 + (slot % 3)*SL5 + (32*kk+8*h)*160 + 32*t5))
    D = 7
    N = 240
    issued = 0
    for n in range(D): reads(n)
    issued = D
    for n in range(N):
        k, t5 = divmod(n, 5)
        if t5 == 0:
            rem = min(PD-1, 47-k)
            a('s_waitcnt vmcnt(%d)' % rem)
        a('s_waitcnt lgkmcnt(%d)' % (2*(issued-(n+1))))
        buf = AR5 + 4*(n % 8)
        a('v_mfma_f32_16x16x32_bf16 %s, %s, %s, %s' % (vr(ACC5+4*t5,4), vr(buf,4), vr(XB+4*(k % NB5),4), '0' if k == 0 else vr(ACC5+4*t5,4)))
        if t5 == 4 and k+PD < 48: bload(k+PD)
        if issued < N:
            if issued % 20 == 0:
                a('s_waitcnt lgkmcnt(0)')
                a('s_barrier')
            reads(issued); issued += 1
    a('s_barrier')
    stamp(a, 3)
    a('s_waitcnt vmcnt(0)')
    for t5 in range(5):
        for e in range(2):
            src = HR+2*t5+e
            a('v_lshlrev_b32 v10, 16, v%d' % src); a('v_and_b32 v11, 0xffff0000, v%d' % src)
            a('v_pk_add_f32 %s, %s, v[10:11]' % (vr(ACC5+4*t5+2*e,2), vr(ACC5+4*t5+2*e,2)))
            a('v_cvt_pk_bf16_f32 v%d, v%d, v%d' % (86+2*t5+e, ACC5+4*t5+2*e, ACC5+4*t5+2*e+1))
    a('s_lshl_b32 s34, s3, 4')
    a('v_add_u32 v5, s34, v2')
    a('v_mul_u32_u24 v5, 160, v5')
    a('v_lshl_add_u32 v5, v4, 3, v5')
    a('v_add_u32 v5, %d, v5' % OT5)
    for t5 in range(5):
        a('ds_write_b64 v5, %s offset:%d' % (vr(86+2*t5,2), 32*t5))
    a('s_waitcnt lgkmcnt(0)')

def p5_final(a, name):
    a('s_barrier')
    a('s_lshl_b32 s34, s4, 7')
    a('s_lshl_b32 s35, s6, 6')
    a('s_add_u32 s34, s34, s35')
    a('s_mul_i32 s34, s34, 1280')
    a('s_mul_i32 s35, s7, 160')
    a('s_add_u32 s34, s34, s35')
    for rep in range(2):
        if rep == 1:
            a('s_cmp_ge_u32 s3, 2')
            a('s_cbranch_scc1 %s_end' % name)
        a('s_lshl_b32 s35, s3, 6')
        a('s_add_u32 s35, s35, %d' % (512*rep))
        a('v_add_u32 v2, s35, v1')
        a('v_mul_u32_u24 v3, 6554, v2')
        a('v_lshrrev_b32 v3, 16, v3')
        a('v_mul_u32_u24 v4, 10, v3')
        a('v_sub_u32 v4, v2, v4')
        a('v_mul_u32_u24 v3, 1280, v3')
        a('v_lshl_add_u32 v3, v4, 4, v3')
        a('v_lshlrev_b32 v2, 4, v2')
        a('v_add_u32 v2, %d, v2' % OT5)
        a('ds_read_b128 v[8:11], v2')
        a('s_waitcnt lgkmcnt(0)')
        a('buffer_store_dwordx4 v[8:11], v3, s[16:19], s34 offen')
```

```python
from build import *
def empty(a, name):
    entry(a, name)
    a.label(name + '_end')
    a('s_endpgm')
def build2(kernels, launches, path):
    a = Asm()
    hdr = ['; @launch kernel=%s grid=(%d,1,1) block=(%d,1,1) lds=%d' % l for l in launches]
    a('.amdgcn_target "amdgcn-amd-amdhsa--gfx950"')
    for (nm, fn, lds) in kernels: fn(a, nm)
    txt = '\n'.join(hdr) + '\n' + a.text()
    for (nm, fn, lds) in kernels: txt += kd(nm)
    open(path, 'w').write(txt)
base = [(nm, 256, 512, lds) for (nm, fn, lds) in ALL]
K = ALL + [('e_kernel', empty, 0)]
build2(K, base + [('e_kernel', 256, 512, 0)]*4, 'v_e4end.s')
build2(K, [('e_kernel', 256, 512, 0)]*4 + base, 'v_e4beg.s')
build2(K, base + [('e_kernel', 1, 64, 0)]*4, 'v_e4small.s')
build2(K, base + base, 'v_twice.s')

import k1
def mk(path, **kw):
    k1.OPT.update(dict(codepf=False, wpf=False, rot=False, codesize=56000)); k1.OPT.update(kw)
    build(ALL, path)
mk('v_cpf.s', codepf=True)
mk('v_wpf.s', wpf=True)
mk('v_rot.s', rot=True)
mk('v_all3.s', codepf=True, wpf=True, rot=True)
```
